```python
import torch

def _softmax(x, axis=-1):
    return torch.softmax(x, dim=axis)
def _gelu(x):
    return torch.nn.functional.gelu(x, approximate="tanh")
def _silu(x):
    return torch.nn.functional.silu(x)
def _sigmoid(x):
    return torch.sigmoid(x)
def _layernorm(x, axis=-1, eps=1e-5):
    m = x.mean(dim=axis, keepdim=True)
    v = x.var(dim=axis, keepdim=True, unbiased=False)
    return (x - m) / torch.sqrt(v + eps)
def _scatter_add(tgt, idx, src, axis=0):
    return tgt.clone().index_add_(axis, idx, src)
def _segment_sum(src, seg, n):
    out = torch.zeros((n,) + src.shape[1:], dtype=src.dtype)
    return out.index_add_(0, seg, src)
def _pad(x, pw):
    flat = tuple(v for pair in reversed(pw) for v in pair)
    return torch.nn.functional.pad(x, flat)

kernel_name = 'sequential_preLN__ssm_conv_h3__dense_activation_silu__prompt'

def setup_inputs():

    _w = (lambda a: (lambda t: t.to(torch.bfloat16) if t.is_floating_point() else t)(torch.as_tensor(a)))
    def _A_setup():
        B, S, D = 1, 2048, 1024
        ks = 4
        return {
            "q": _w((lambda *s: torch.randn(*s, dtype=torch.bfloat16) * 0.05)(B, S, D)),
            "k": _w((lambda *s: torch.randn(*s, dtype=torch.bfloat16) * 0.2)(B, S, D)),
            "v": _w((lambda *s: torch.randn(*s, dtype=torch.bfloat16) * 0.2)(B, S, D)),
            "shift_k": _w((lambda *s: torch.randn(*s, dtype=torch.bfloat16) * 0.2)(D, ks) * 0.5),
            "ssm_k": _w((lambda *s: torch.randn(*s, dtype=torch.bfloat16) * 0.4)(D, S) * (1.0 / S ** 0.5)),
            "ssm_D": _w((lambda *s: torch.randn(*s, dtype=torch.bfloat16) * 0.2)(D)),
        }
    _A_in = _A_setup()

    def _B_setup():
        B, S, D, F = 1, 2048, 1024, 3584
        return {
            "x": _w((lambda *s: torch.randn(*s, dtype=torch.bfloat16) * 0.05)(B, S, D)),
            "w1": _w((lambda *s: torch.randn(*s, dtype=torch.bfloat16) * 0.8)(D, F) * (D ** -0.5)),
            "w2": _w((lambda *s: torch.randn(*s, dtype=torch.bfloat16) * 0.1)(F, D) * (F ** -0.5)),
        }
    _B_in = _B_setup()

    return {
        "A_q": _A_in["q"],
        "A_k": _A_in["k"],
        "A_v": _A_in["v"],
        "A_shift_k": _A_in["shift_k"],
        "A_ssm_k": _A_in["ssm_k"],
        "A_ssm_D": _A_in["ssm_D"],
        "B_x": _B_in["x"],
        "B_w1": _B_in["w1"],
        "B_w2": _B_in["w2"],
    }

def reference(A_q, A_k, A_v, A_shift_k, A_ssm_k, A_ssm_D, B_x, B_w1, B_w2):
    def _A_ref(q, k, v, shift_k, ssm_k, ssm_D):
        B, S, D = q.shape
        ks = shift_k.shape[-1]
        k_pad = _pad(k, ((0, 0), (ks - 1, 0), (0, 0)))
        k_shift = torch.zeros_like(k)
        for t in range(ks):
            k_shift = k_shift + k_pad[:, t:t + S, :] * shift_k[:, ks - 1 - t][None, None, :]
        kv = k_shift * v
        L = 2 * S
        kv_pad = _pad(kv, ((0, 0), (0, S), (0, 0)))
        kf_pad = _pad(ssm_k, ((0, 0), (0, S)))
        kv_f = (lambda x, axes=(-2,-1): torch.fft.rfft2(x.float(), dim=axes))(kv_pad[:, None, :, :], axes=(1, 2))
        kf_f = (lambda x, axes=(-2,-1): torch.fft.rfft2(x.float(), dim=axes))(kf_pad[:, None, :], axes=(1, 2))
        kf_f = (lambda x, *d: x.permute(*d))(kf_f, 1, 2, 0)
        y_f = kv_f * kf_f[None, :, :, :]
        y = (lambda x, s, axes=(-2,-1): torch.fft.irfft2(x, s=s, dim=axes).to(torch.bfloat16))(y_f, (1, L), axes=(1, 2))[:, 0, :S, :]
        y = y + kv * ssm_D[None, None, :]
        return q * y

    def _B_ref(x, w1, w2):
        h = torch.einsum("bsd,df->bsf", x, w1)
        h = _silu(h)
        out = torch.einsum("bsf,fd->bsd", h, w2)
        return out

    x = A_q
    h = x + _A_ref(_layernorm(x, axis=-1), A_k, A_v, A_shift_k, A_ssm_k, A_ssm_D)
    h2 = h + _B_ref(_layernorm(h, axis=-1), B_w1, B_w2)
    return h2
```

```python
class Asm:
    def __init__(self):
        self.lines = []
        self.kernels = []
        self.launches = []
        self.lbl = 0
    def __call__(self, s):
        for ln in s.split("\n"):
            self.lines.append("  " + ln.strip() if ln.strip() and not ln.strip().endswith(":") else ln.strip())
    def label(self, base="L"):
        self.lbl += 1
        return "%s_%d" % (base, self.lbl)
    def begin(self, name, grid, block, lds, vgpr=256, sgpr=96, accum=None):
        self.launches.append("; @launch kernel=%s grid=(%d,1,1) block=(%d,1,1) lds=%d" % (name, grid, block, lds))
        if accum is None:
            accum = (min(vgpr, 256) + 3) // 4 * 4
        self.kernels.append((name, vgpr, sgpr, accum))
        self.lines += [".globl %s" % name, ".p2align 8", ".type %s,@function" % name, "%s:" % name]
    def relaunch(self, name, grid, block, lds):
        self.launches.append("; @launch kernel=%s grid=(%d,1,1) block=(%d,1,1) lds=%d" % (name, grid, block, lds))
    def srd(self, d, lo, nbytes):
        self("s_mov_b32 s%d, s%d" % (d, lo))
        self("s_and_b32 s%d, s%d, 0xffff" % (d + 1, lo + 1))
        self("s_mov_b32 s%d, 0x%x" % (d + 2, nbytes))
        self("s_mov_b32 s%d, 0x00020000" % (d + 3))
    def text(self, header=""):
        out = [header.rstrip("\n")] if header else []
        out += self.launches
        out += ['.amdgcn_target "amdgcn-amd-amdhsa--gfx950"', ".text"]
        out += self.lines
        out.append('.section .rodata,"a"')
        for name, vgpr, sgpr, accum in self.kernels:
            out += [".p2align 6", ".amdhsa_kernel %s" % name,
                    "  .amdhsa_next_free_vgpr %d" % vgpr, "  .amdhsa_next_free_sgpr %d" % sgpr,
                    "  .amdhsa_accum_offset %d" % accum, "  .amdhsa_group_segment_fixed_size 0",
                    "  .amdhsa_kernarg_size 96", "  .amdhsa_user_sgpr_count 2",
                    "  .amdhsa_user_sgpr_kernarg_segment_ptr 1", "  .amdhsa_system_sgpr_workgroup_id_x 1",
                    ".end_amdhsa_kernel"]
        return "\n".join(out) + "\n"
```

```python
import sys
from asmlib import Asm

KVB = 0x000000
XB  = 0x400000
ST1 = 0x800000
HT  = 0xC00000
H1  = 0x1000000
H1_BYTES = 16 * 112 * 8 * 1024
PX  = 0x2000000
FLG = 0x2800000
MB4 = 0x400000
ONES = 0x3f803f80

def vr(b, n):
    return "v[%d:%d]" % (b, b + n - 1) if n > 1 else "v%d" % b
def sr(b, n):
    return "s[%d:%d]" % (b, b + n - 1) if n > 1 else "s%d" % b

STAMP = False
STB = 0x3000000
def stamp(a, i):
    if STAMP: a("%s s[%d:%d]" % (STAMP, 70 + 2 * i, 71 + 2 * i))
def stamp_store(a, kidx, wavesgpr, nw, ws_lo):
    if not STAMP: return
    a("s_waitcnt lgkmcnt(0)")
    a("s_mul_i32 s86, s2, %d\ns_add_u32 s86, s86, s%d\ns_lshl_b32 s86, s86, 5\ns_add_u32 s86, s86, 0x%x" % (nw, wavesgpr, STB + kidx * 0x100000))
    a("s_mov_b64 exec, 1")
    a("v_mov_b32 v1, s86")
    for i in range(8): a("v_mov_b32 v%d, s%d" % (2 + i, 70 + 2 * i))
    a("global_store_dwordx4 v1, v[2:5], s[%d:%d]\nglobal_store_dwordx4 v1, v[6:9], s[%d:%d] offset:16" % (ws_lo, ws_lo + 1, ws_lo, ws_lo + 1))

def stats_finish(a, S, Q, T1, T2, n):
    a("v_mul_f32 v%d, 0x%x, v%d" % (S, f32bits(1.0 / n), S))
    a("v_mul_f32 v%d, 0x%x, v%d" % (Q, f32bits(1.0 / n), Q))
    a("v_fma_f32 v%d, -v%d, v%d, v%d" % (Q, S, S, Q))
    a("v_max_f32 v%d, 0, v%d" % (Q, Q))
    a("v_cvt_pk_bf16_f32 v%d, v%d, v%d" % (T1, Q, Q))
    a("v_lshlrev_b32 v%d, 16, v%d" % (T1, T1))
    a("v_add_f32 v%d, 0x%x, v%d" % (T1, f32bits(1e-5), T1))
    a("v_cvt_pk_bf16_f32 v%d, v%d, v%d" % (T1, T1, T1))
    a("v_lshlrev_b32 v%d, 16, v%d" % (T1, T1))
    a("v_sqrt_f32 v%d, v%d" % (T1, T1))
    a("s_nop 0")
    a("v_cvt_pk_bf16_f32 v%d, v%d, v%d" % (S, S, T1))

import struct
def f32bits(x):
    return struct.unpack("<I", struct.pack("<f", x))[0]

def gen_k1(a):
    a.begin("k1_kernel", 256, 256, 512, vgpr=168, sgpr=48)
    a("s_cmp_ge_u32 s2, 256\ns_cbranch_scc1 K1_END")
    a("s_load_dwordx4 s[4:7], s[0:1], 0\ns_load_dwordx4 s[24:27], s[0:1], 16\ns_load_dwordx2 s[28:29], s[0:1], 88")
    a("s_lshl_b32 s3, s2, 14")
    a("v_lshlrev_b32 v1, 3, v0\nv_add_u32 v1, s3, v1")
    a("v_add_u32 v2, 0xffffe800, v1")
    a("v_add_u32 v3, 0xfffff800, v1")
    a("v_lshlrev_b32 v4, 5, v0")
    a("s_mov_b32 s30, 4096\ns_mov_b32 s31, 8192\ns_mov_b32 s32, 12288")
    a("s_waitcnt lgkmcnt(0)")
    a.srd(8, 4, MB4); a.srd(12, 6, MB4); a.srd(16, 24, MB4); a.srd(20, 26, 8192); a.srd(36, 28, 0x1000000)
    KR, VR, XR, SH = 10, 32, 48, 64
    def rowload(dst, srd, r):
        so = ["0", "s30", "s31", "s32"][r // 2]
        a("buffer_load_dwordx2 %s, v1, %s, %s offen offset:%d" % (vr(dst, 2), sr(srd, 4), so, (r % 2) * 2048))
    a("buffer_load_dwordx4 %s, v4, s[20:23], 0 offen" % vr(SH, 4))
    a("buffer_load_dwordx4 %s, v4, s[20:23], 0 offen offset:16" % vr(SH + 4, 4))
    a("buffer_load_dwordx2 %s, v2, s[12:15], 0 offen" % vr(KR, 2))
    a("buffer_load_dwordx2 %s, v2, s[12:15], 0 offen offset:2048" % vr(KR + 2, 2))
    a("buffer_load_dwordx2 %s, v3, s[12:15], 0 offen" % vr(KR + 4, 2))
    for r in range(8): rowload(KR + 6 + 2 * r, 12, r)
    for r in range(8): rowload(VR + 2 * r, 16, r)
    for r in range(8): rowload(XR + 2 * r, 8, r)
    a("s_mov_b32 s33, 0xffff0000\ns_mov_b32 s34, 0x05040100\ns_mov_b32 s35, 0x07060302\ns_mov_b32 s40, 0x%x" % ONES)
    a("v_lshlrev_b32 v5, 4, v0\nv_add_u32 v5, s3, v5")
    WF, KF, KS = 72, 88, 132
    a("s_waitcnt vmcnt(27)")
    for c in range(4):
        for j in range(4):
            src = SH + 2 * c + j // 2
            if j % 2 == 0: a("v_lshlrev_b32 v%d, 16, v%d" % (WF + 4 * j + c, src))
            else: a("v_and_b32 v%d, s33, v%d" % (WF + 4 * j + c, src))
    def unpack(dst, src):
        a("v_lshlrev_b32 v%d, 16, v%d\nv_and_b32 v%d, s33, v%d" % (dst, src, dst + 1, src))
        a("v_lshlrev_b32 v%d, 16, v%d\nv_and_b32 v%d, s33, v%d" % (dst + 2, src + 1, dst + 3, src + 1))
    a("s_waitcnt vmcnt(16)")
    for r in range(11): unpack(KF + 4 * r, KR + 2 * r)
    for r in range(8):
        for j in (3, 2, 1, 0):
            for p in range(2):
                d = KS + 4 * r + 2 * p; w = WF + 4 * j + 2 * p; k = KF + 4 * (r + 3 - j) + 2 * p
                if j == 3: a("v_pk_mul_f32 %s, %s, %s" % (vr(d, 2), vr(w, 2), vr(k, 2)))
                else: a("v_pk_fma_f32 %s, %s, %s, %s" % (vr(d, 2), vr(w, 2), vr(k, 2), vr(d, 2)))
    a("s_waitcnt vmcnt(8)")
    VF = KF
    for r in range(8): unpack(VF + 4 * r, VR + 2 * r)
    for r in range(8):
        for p in range(2):
            d = KS + 4 * r + 2 * p
            a("v_pk_mul_f32 %s, %s, %s" % (vr(d, 2), vr(d, 2), vr(VF + 4 * r + 2 * p, 2)))
    G = 10
    G = 12
    for c in range(4):
        for d in range(4):
            a("v_cvt_pk_bf16_f32 v%d, v%d, v%d" % (G + 4 * c + d, KS + 4 * (7 - 2 * d) + c, KS + 4 * (6 - 2 * d) + c))
    for c in range(4):
        so = ["0", "s30", "s31", "s32"][c]
        a("buffer_store_dwordx4 %s, v5, s[36:39], %s offen" % (vr(G + 4 * c, 4), so))
    a("v_add_u32 v6, 0x%x, v5" % XB)
    a("s_waitcnt vmcnt(4)")
    G2 = 72
    for c in range(4):
        for d in range(4):
            a("v_perm_b32 v%d, v%d, v%d, s%d" % (G2 + 4 * c + d, XR + 2 * (2 * d + 1) + c // 2, XR + 2 * (2 * d) + c // 2, 34 + (c & 1)))
    for c in range(4):
        so = ["0", "s30", "s31", "s32"][c]
        a("buffer_store_dwordx4 %s, v6, s[36:39], %s offen" % (vr(G2 + 4 * c, 4), so))
    R = 88
    for r in range(8):
        a("v_dot2_f32_bf16 v%d, v%d, s40, 0" % (R + r, XR + 2 * r))
        a("v_dot2_f32_bf16 v%d, v%d, v%d, 0" % (R + 8 + r, XR + 2 * r, XR + 2 * r))
    for r in range(8):
        a("v_dot2_f32_bf16 v%d, v%d, s40, v%d" % (R + r, XR + 2 * r + 1, R + r))
        a("v_dot2_f32_bf16 v%d, v%d, v%d, v%d" % (R + 8 + r, XR + 2 * r + 1, XR + 2 * r + 1, R + 8 + r))
    a("s_nop 2")
    for i in range(8): a("v_permlane32_swap_b32 v%d, v%d" % (R + i, R + 8 + i))
    for i in range(8): a("v_add_f32 v%d, v%d, v%d" % (R + i, R + i, R + 8 + i))
    a("s_nop 1")
    for i in range(4): a("v_permlane16_swap_b32 v%d, v%d" % (R + i, R + 4 + i))
    for i in range(4): a("v_add_f32 v%d, v%d, v%d" % (R + i, R + i, R + 4 + i))
    for sh in (8, 4, 2, 1):
        for i in range(4):
            a("v_add_f32_dpp v%d, v%d, v%d row_ror:%d row_mask:0xf bank_mask:0xf" % (R + i, R + i, R + i, sh))
    a("v_and_b32 v7, 15, v0\nv_cmp_eq_u32 vcc, 0, v7\nv_and_b32 v8, 0xf0, v0")
    a("s_and_saveexec_b64 s[42:43], vcc")
    a("ds_write_b128 v8, %s" % vr(R, 4))
    a("s_mov_b64 exec, s[42:43]")
    a("s_waitcnt lgkmcnt(0)\ns_barrier")
    a("v_cmp_gt_u32 vcc, 8, v0\ns_and_saveexec_b64 s[42:43], vcc\ns_cbranch_execz K1_END")
    a("v_lshlrev_b32 v8, 2, v0")
    for w in range(4):
        a("ds_read_b32 v%d, v8 offset:%d\nds_read_b32 v%d, v8 offset:%d" % (R + w, 64 * w, R + 4 + w, 64 * w + 32))
    a("s_lshl_b32 s3, s2, 5\ns_add_u32 s3, s3, 0x%x\nv_add_u32 v8, s3, v8" % ST1)
    a("s_waitcnt lgkmcnt(0)")
    a("v_add_f32 v%d, v%d, v%d\nv_add_f32 v%d, v%d, v%d\nv_add_f32 v%d, v%d, v%d" % (R, R, R + 1, R + 2, R + 2, R + 3, R, R, R + 2))
    a("v_add_f32 v%d, v%d, v%d\nv_add_f32 v%d, v%d, v%d\nv_add_f32 v%d, v%d, v%d" % (R + 4, R + 4, R + 5, R + 6, R + 6, R + 7, R + 4, R + 4, R + 6))
    stats_finish(a, R, R + 4, R + 5, R + 6, 1024)
    a("buffer_store_dword v%d, v8, s[36:39], 0 offen" % R)
    a("K1_END:\ns_endpgm")

K2_KC = 0; K2_CS = 4160; K2_CH = 4 * K2_CS
K2_U = 4 * K2_CH
K2_X = K2_U + 288 * 64
K2_ST = K2_X + 16384
K2_RED = K2_ST + 8192
K2_LDS = K2_RED + 32768

def gen_k2(a, prefetch=True):
    a.begin("k2_kernel", 256, 512, K2_LDS, vgpr=208, sgpr=96)
    a("s_cmp_ge_u32 s2, 256\ns_cbranch_scc1 K2_END")
    for i in range(8): stamp(a, i)
    a("s_load_dwordx4 s[4:7], s[0:1], 32\ns_load_dwordx4 s[8:11], s[0:1], 56\ns_load_dwordx2 s[12:13], s[0:1], 88")
    a("s_and_b32 s14, s2, 7\ns_lshl_b32 s14, s14, 5\ns_lshr_b32 s15, s2, 3\ns_add_u32 s14, s14, s15")
    a("s_lshr_b32 s15, s14, 6\ns_and_b32 s14, s14, 63")
    a("v_lshrrev_b32 v2, 6, v0\nv_and_b32 v1, 63, v0\ns_nop 0\nv_readfirstlane_b32 s16, v2")
    a("s_nop 1")
    a("s_and_b32 s17, s16, 3\ns_lshr_b32 s18, s16, 2")
    a("s_lshl_b32 s19, s14, 4\ns_lshl_b32 s20, s17, 2\ns_add_u32 s19, s19, s20\ns_add_u32 s19, s19, s15")
    a("s_lshl_b32 s20, s18, 11\nv_lshlrev_b32 v3, 4, v1\nv_add_u32 v3, s20, v3")
    a("v_add_u32 v4, -8, v3")
    a("v_lshlrev_b32 v5, 4, v1\nv_add_u32 v5, 0xffffffe0, v5")
    a("v_cmp_eq_u32 vcc, 2, v1\nv_mov_b32 v6, 4096\ns_nop 0\nv_cndmask_b32 v5, v5, v6, vcc")
    a("v_add_u32 v6, -8, v5")
    a("s_waitcnt lgkmcnt(0)")
    a("s_lshl_b32 s20, s19, 12\ns_add_u32 s4, s4, s20\ns_addc_u32 s5, s5, 0")
    a.srd(24, 4, 4096)
    a.srd(28, 12, 0x1000000)
    a("s_lshl_b32 s20, s19, 1\ns_and_b32 s20, s20, 0xfffffffc\ns_add_u32 s6, s6, s20\ns_addc_u32 s7, s7, 0")
    a("s_load_dword s21, s[6:7], 0")
    DK = [8, 16, 24]
    for p in range(2):
        a("buffer_load_dwordx4 %s, v3, s[24:27], 0 offen offset:%d" % (vr(DK[p] + 4, 4), 1024 * p))
        a("buffer_load_dwordx2 %s, v4, s[24:27], 0 offen offset:%d" % (vr(DK[p] + 2, 2), 1024 * p)) if p == 0 else \
            a("buffer_load_dwordx2 %s, v3, s[24:27], 0 offen offset:%d" % (vr(DK[p] + 2, 2), 1024 * p - 8))
    a("v_cmp_gt_u32 vcc, 3, v1\ns_and_saveexec_b64 s[22:23], vcc")
    a("buffer_load_dwordx4 %s, v5, s[24:27], 0 offen" % vr(DK[2] + 4, 4))
    a("buffer_load_dwordx2 %s, v6, s[24:27], 0 offen" % vr(DK[2] + 2, 2))
    a("s_mov_b64 exec, s[22:23]")
    a("v_lshrrev_b32 v32, 4, v1\nv_and_b32 v33, 3, v1\nv_xor_b32 v32, v32, v33\nv_lshlrev_b32 v32, 4, v32")
    a("s_lshl_b32 s20, s15, 12\ns_lshl_b32 s32, s14, 6\ns_add_u32 s20, s20, s32\nv_add_u32 v32, s20, v32")
    a("v_lshrrev_b32 v33, 2, v1\ns_lshl_b32 s20, s16, 5\nv_add_u32 v33, s20, v33")
    a("v_lshlrev_b32 v34, 14, v33\nv_add_u32 v34, v34, v32")
    a("v_sub_u32 v35, 239, v33\nv_lshlrev_b32 v35, 14, v35\nv_add_u32 v35, v35, v32")
    a("s_mov_b32 s33, 0x40000\ns_mov_b32 s34, 0x%x\ns_mov_b32 s35, 0x%x" % (XB, XB + 0x40000))
    a("s_lshl_b32 s20, s16, 11\ns_add_u32 m0, s20, %d\ns_nop 0" % K2_U)
    a("buffer_load_dwordx4 v35, s[28:31], s33 offen lds")
    a("s_add_u32 m0, m0, 1024\ns_nop 0")
    a("buffer_load_dwordx4 v35, s[28:31], 0 offen lds")
    a("s_add_u32 m0, s20, %d\ns_nop 0" % K2_X)
    a("buffer_load_dwordx4 v34, s[28:31], s34 offen lds")
    a("s_add_u32 m0, m0, 1024\ns_nop 0")
    a("buffer_load_dwordx4 v34, s[28:31], s35 offen lds")
    a("s_lshl_b32 s20, s16, 10\ns_add_u32 m0, s20, %d\ns_add_u32 s20, s20, 0x%x\nv_lshlrev_b32 v36, 4, v1" % (K2_ST, ST1))
    a("buffer_load_dwordx4 v36, s[28:31], s20 offen lds")
    NPF = 0
    if prefetch:
        a.srd(36, 8, 7340032); a.srd(40, 10, 7340032)
        a("s_mul_i32 s20, s2, 28672\nv_lshlrev_b32 v37, 4, v0\nv_add_u32 v37, s20, v37")
        a("s_mov_b32 s44, 8192\ns_mov_b32 s45, 16384\ns_mov_b32 s46, 24576")
        PF = 176
        i = 0
        for srd in (36, 40):
            for so in ("0", "s44", "s45"):
                a("buffer_load_dwordx4 %s, v37, %s, %s offen" % (vr(PF + 4 * i, 4), sr(srd, 4), so)); i += 1
        a("v_and_b32 v38, 255, v0\nv_lshlrev_b32 v38, 4, v38\nv_add_u32 v38, s20, v38")
        a("s_cmp_eq_u32 s18, 0\ns_cselect_b32 s36, s36, s40\ns_cselect_b32 s37, s37, s41")
        a("buffer_load_dwordx4 %s, v38, s[36:39], s46 offen" % vr(PF + 4 * i, 4))
        NPF = 7
    a("v_mov_b32 v40, 0\nv_mov_b32 v41, 0\nv_mov_b32 v42, 0\nv_mov_b32 v43, 0\nv_lshlrev_b32 v39, 4, v0")
    a("s_cmp_lt_u32 s16, 2\ns_cbranch_scc0 K2_NOPAD")
    a("ds_write_b128 v39, v[40:43] offset:%d" % (K2_U + 16384 - 65536) if False else "v_add_u32 v39, %d, v39\nds_write_b128 v39, v[40:43]" % (K2_U + 16384))
    a("K2_NOPAD:")
    a("s_mul_i32 s20, s17, %d\ns_add_u32 s20, s20, 32\nv_add_u32 v44, s20, v3\nv_add_u32 v45, s20, v5" % K2_CH)
    stamp(a, 1)
    a("s_waitcnt vmcnt(%d)" % (5 + NPF))
    stamp(a, 2)
    T = 48
    for p in range(3):
        D = DK[p] + 4
        if p == 2: a("s_mov_b64 exec, 7")
        t = T + 12 * p
        for i in range(4): a("v_alignbit_b32 v%d, v%d, v%d, 16" % (t + i, D + i, D + i - 1))
        for i in range(4): a("v_mov_b32 v%d, v%d" % (t + 4 + i, D + i - 1))
        for i in range(4): a("v_alignbit_b32 v%d, v%d, v%d, 16" % (t + 8 + i, D + i - 1, D + i - 2))
        ad = "v44" if p < 2 else "v45"
        off = 1024 * p if p < 2 else 0
        a("ds_write_b128 %s, %s offset:%d" % (ad, vr(D, 4), off))
        for sg in range(1, 4):
            a("ds_write_b128 %s, %s offset:%d" % (ad, vr(t + 4 * (sg - 1), 4), off + sg * K2_CS))
    a("s_mov_b64 exec, -1")
    a("v_and_b32 v2, 15, v1\nv_lshrrev_b32 v3, 4, v1")
    a("v_and_b32 v4, 1, v3\nv_lshrrev_b32 v5, 1, v3")
    a("v_sub_u32 v6, 3, v2\nv_and_b32 v6, 3, v6\nv_mul_u32_u24 v6, %d, v6" % K2_CS)
    a("v_lshrrev_b32 v7, 2, v2\nv_lshlrev_b32 v7, 3, v7\nv_add_u32 v6, v6, v7")
    a("v_lshlrev_b32 v7, 5, v5\nv_add_u32 v6, v6, v7\nv_lshlrev_b32 v7, 4, v4\nv_sub_u32 v6, v6, v7")
    a("s_mul_i32 s20, s17, %d\ns_lshl_b32 s32, s18, 8\ns_add_u32 s20, s20, s32\ns_add_u32 s20, s20, 24\nv_add_u32 v6, s20, v6" % K2_CH)
    BA = 8
    a("v_lshlrev_b32 v7, 1, v5\nv_sub_u32 v7, v7, v4\nv_lshlrev_b32 v12, 1, v2\nv_sub_u32 v7, v7, v12")
    a("s_lshl_b32 s20, s18, 4\ns_add_u32 s20, s20, 31\nv_add_u32 v7, s20, v7")
    for ee in range(4):
        a("v_add_u32 v12, %d, v7\nv_lshrrev_b32 v13, 2, v12\nv_and_b32 v13, 3, v13\nv_xor_b32 v13, s17, v13" % (4 * ee))
        a("v_lshlrev_b32 v13, 4, v13\nv_lshlrev_b32 v12, 6, v12\nv_add3_u32 v%d, v12, v13, v%d" % (BA + ee, 40))
        a("v_add_u32 v%d, %d, v%d" % (BA + ee, K2_U, BA + ee))
    a("s_waitcnt vmcnt(%d) lgkmcnt(0)\ns_barrier" % (3 + NPF))
    stamp(a, 3)
    if STAMP: a("s_waitcnt lgkmcnt(0)")
    ACC = 16; FR = [48, 112]
    def rd(ee, n):
        f = FR[ee & 1] + 8 * n
        a("ds_read_b64 %s, v6 offset:%d" % (vr(f, 2), 512 * n + 64 * ee))
        a("ds_read_b64 %s, v6 offset:%d" % (vr(f + 2, 2), 512 * n + 64 * ee + 8))
        a("ds_read_b128 %s, v%d offset:%d" % (vr(f + 4, 4), BA + ee, 2048 * (7 - n)))
    order = []
    for n in range(8):
        grp = []
        for o in range(n):
            if n + o <= 7: grp += [(n, o), (o, n)]
        if 2 * n <= 7: grp.append((n, n))
        order.append(grp)
    for n in range(8): rd(0, n)
    touched = set()
    for ee in range(4):
        for n in range(8):
            later = 3 * (7 - n) + (3 * n if ee < 3 else 0)
            a("s_waitcnt lgkmcnt(%d)" % min(later, 15))
            first = True
            for (i, m) in order[n]:
                t = i + m
                c = vr(ACC + 4 * t, 4) if t in touched else "0"
                touched.add(t)
                a("v_mfma_f32_16x16x32_bf16 %s, %s, %s, %s" % (vr(ACC + 4 * t, 4), vr(FR[ee & 1] + 8 * i, 4), vr(FR[ee & 1] + 8 * m + 4, 4), c))
                if first and ee < 3:
                    rd(ee + 1, n)
                first = False
    stamp(a, 4)
    a("s_lshl_b32 s20, s16, 12\ns_add_u32 s20, s20, %d\nv_lshlrev_b32 v12, 4, v1\nv_add_u32 v13, s20, v12" % K2_RED)
    a("s_xor_b32 s20, s16, 4\ns_lshl_b32 s20, s20, 12\ns_add_u32 s20, s20, %d\nv_add_u32 v14, s20, v12" % K2_RED)
    a("v_lshlrev_b32 v12, 1, v2\nv_add_u32 v12, v12, v5")
    a("s_lshl_b32 s20, s18, 7\ns_sub_u32 s20, 159, s20\nv_sub_u32 v7, s20, v12")
    a("v_lshrrev_b32 v8, 2, v7\nv_and_b32 v8, 3, v8\nv_xor_b32 v8, s17, v8\nv_lshlrev_b32 v8, 4, v8")
    a("v_lshlrev_b32 v7, 6, v7\nv_xor_b32 v9, 1, v4\nv_lshlrev_b32 v9, 3, v9\nv_add3_u32 v7, v7, v8, v9\nv_add_u32 v7, %d, v7" % K2_U)
    a("s_lshl_b32 s20, s18, 7\nv_add_u32 v8, s20, v12")
    a("v_lshrrev_b32 v9, 2, v8\nv_and_b32 v9, 3, v9\nv_xor_b32 v9, s17, v9\nv_lshlrev_b32 v9, 4, v9")
    a("v_lshlrev_b32 v8, 6, v8\nv_lshlrev_b32 v10, 3, v4\nv_add3_u32 v8, v8, v9, v10\nv_add_u32 v8, %d, v8" % K2_X)
    a("v_lshlrev_b32 v9, 4, v2\nv_lshlrev_b32 v10, 2, v3\ns_lshl_b32 s20, s18, 10\nv_add3_u32 v9, v9, v10, s20")
    a("v_lshlrev_b32 v10, 2, v9\nv_add_u32 v10, %d, v10" % K2_ST)
    a("v_lshlrev_b32 v9, 1, v9\ns_lshl_b32 s20, s19, 12\ns_add_u32 s20, s20, 0x%x\nv_add_u32 v9, s20, v9" % HT)
    a("s_and_b32 s20, s15, 1\ns_cmp_eq_u32 s20, 0\ns_lshl_b32 s20, s21, 16\ns_and_b32 s21, s21, 0xffff0000\ns_cselect_b32 s21, s20, s21") if False else None
    a("s_lshl_b32 s20, s21, 16\ns_and_b32 s21, s21, 0xffff0000\ns_bitcmp0_b32 s15, 0\ns_cselect_b32 s21, s20, s21")
    a("s_mov_b32 s33, 0xffff0000")
    a("s_cmp_eq_u32 s18, 0\ns_cbranch_scc0 K2_SEND_LO")
    for tt in range(4): a("ds_write_b128 v13, %s offset:%d" % (vr(ACC + 16 + 4 * tt, 4), 1024 * tt))
    a("s_branch K2_SENT")
    a("K2_SEND_LO:")
    for tt in range(4): a("ds_write_b128 v13, %s offset:%d" % (vr(ACC + 4 * tt, 4), 1024 * tt))
    a("s_nop 1")
    for i in range(16): a("v_mov_b32 v%d, v%d" % (ACC + i, ACC + 16 + i))
    a("K2_SENT:")
    a("s_waitcnt vmcnt(%d) lgkmcnt(0)\ns_barrier" % NPF)
    stamp(a, 5)
    if STAMP: a("s_waitcnt lgkmcnt(0)")
    O, U_, X_, S_ = 48, 64, 72, 80
    for tt in range(4):
        a("ds_read_b128 %s, v14 offset:%d" % (vr(O + 4 * tt, 4), 1024 * tt))
        a("ds_read_b64 %s, v7 offset:%d" % (vr(U_ + 2 * tt, 2), 2048 * (3 - tt)))
        a("ds_read_b64 %s, v8 offset:%d" % (vr(X_ + 2 * tt, 2), 2048 * tt))
        a("ds_read_b128 %s, v10 offset:%d" % (vr(S_ + 4 * tt, 4), 1024 * tt))
    W = 96
    for tt in range(4):
        a("s_waitcnt lgkmcnt(%d)" % (4 * (3 - tt)))
        y = ACC + 4 * tt; w = W + 20 * tt
        uf, xf, mf, rf = w, w + 4, w + 8, w + 12
        for r in range(4): a("v_and_b32 v%d, s33, v%d" % (rf + r, S_ + 4 * tt + r))
        for r in range(4): a("v_rcp_f32 v%d, v%d" % (rf + r, rf + r))
        for r in range(4): a("v_add_f32 v%d, v%d, v%d" % (y + r, y + r, O + 4 * tt + r))
        a("v_and_b32 v%d, s33, v%d\nv_lshlrev_b32 v%d, 16, v%d" % (uf + 0, U_ + 2 * tt + 1, uf + 1, U_ + 2 * tt + 1))
        a("v_and_b32 v%d, s33, v%d\nv_lshlrev_b32 v%d, 16, v%d" % (uf + 2, U_ + 2 * tt, uf + 3, U_ + 2 * tt))
        a("v_lshlrev_b32 v%d, 16, v%d\nv_and_b32 v%d, s33, v%d" % (xf + 0, X_ + 2 * tt, xf + 1, X_ + 2 * tt))
        a("v_lshlrev_b32 v%d, 16, v%d\nv_and_b32 v%d, s33, v%d" % (xf + 2, X_ + 2 * tt + 1, xf + 3, X_ + 2 * tt + 1))
        for r in range(4): a("v_lshlrev_b32 v%d, 16, v%d" % (mf + r, S_ + 4 * tt + r))
        for r in range(4): a("v_fma_f32 v%d, v%d, s21, v%d" % (y + r, uf + r, y + r))
        for r in range(4): a("v_sub_f32 v%d, v%d, v%d" % (mf + r, xf + r, mf + r))
        for r in range(4): a("v_mul_f32 v%d, v%d, v%d" % (mf + r, mf + r, rf + r))
        for r in range(4): a("v_fma_f32 v%d, v%d, v%d, v%d" % (y + r, mf + r, y + r, xf + r))
        a("v_cvt_pk_bf16_f32 v%d, v%d, v%d\nv_cvt_pk_bf16_f32 v%d, v%d, v%d" % (w + 16, y, y + 1, w + 17, y + 2, y + 3))
        a("buffer_store_dwordx2 %s, v9, s[28:31], 0 offen offset:%d" % (vr(w + 16, 2), 512 * tt))
    stamp(a, 6)
    if STAMP: a("s_waitcnt vmcnt(0)")
    stamp(a, 7)
    stamp_store(a, 1, 16, 8, 12)
    a("K2_END:\ns_endpgm")

if __name__ == "__main__":
    STAMP = "s_memrealtime" if "--stamp" in sys.argv else ("s_memtime" if "--stampc" in sys.argv else False)
    a = Asm()
    gen_k1(a)
    gen_k2(a, prefetch="--nopf" not in sys.argv)
    sys.stdout.write(a.text())
```

```python
from gen import *
import gen

LOG2E = 1.4426950408889634

K3_SUB = 22528; K3_STG = 2 * K3_SUB; K3_R = 3
K3_TAB = K3_STG * K3_R
K3_CS = K3_TAB + 1024
K3_LDS = K3_CS + 896
K3_NST = 16

def lane_parts(a):
    a("v_and_b32 v1, 63, v0\nv_lshrrev_b32 v2, 4, v1\nv_bfe_u32 v3, v1, 2, 2\nv_and_b32 v4, 3, v1\nv_and_b32 v5, 1, v2")

def gen_k3(a):
    a.begin("k3_kernel", 256, 512, K3_LDS, vgpr=224, sgpr=96)
    a("s_cmp_ge_u32 s2, 256\ns_cbranch_scc1 K3_END")
    for i in range(8): stamp(a, i)
    a("s_load_dwordx2 s[4:5], s[0:1], 56\ns_load_dwordx2 s[12:13], s[0:1], 88")
    a("s_and_b32 s6, s2, 7\ns_lshr_b32 s7, s2, 3")
    a("s_and_b32 s14, s6, 1\ns_lshl_b32 s14, s14, 3\ns_and_b32 s15, s7, 7\ns_add_u32 s14, s14, s15")
    a("s_lshr_b32 s15, s6, 1\ns_lshl_b32 s15, s15, 2\ns_lshr_b32 s7, s7, 3\ns_add_u32 s15, s15, s7")
    a("v_lshrrev_b32 v6, 6, v0")
    lane_parts(a)
    a("v_readfirstlane_b32 s16, v6")
    a("s_mov_b32 s30, %d\ns_mov_b32 s31, %d" % (K3_STG, -(K3_R - 1) * K3_STG & 0xffffffff))
    a("s_cmp_lt_u32 s16, 4\ns_cbranch_scc1 K3_CONS")
    a("s_sub_u32 s17, s16, 4")
    a("s_lshr_b32 s18, s17, 1\ns_and_b32 s19, s17, 1")
    VO = 8
    a("s_mul_i32 s20, s15, 448\ns_mul_i32 s21, s18, %d\ns_add_u32 s20, s20, s21" % (32 * 7168))
    def wpiece(v, pi):
        a("v_add_u32 v6, %d, v1\ns_mov_b32 s22, 0x924924a\nv_mul_hi_u32 v7, v6, s22" % (64 * pi))
        a("v_mul_u32_u24 v19, 28, v7\nv_sub_u32 v6, v6, v19")
        a("v_lshrrev_b32 v19, 1, v7\nv_and_b32 v19, 2, v19\nv_xor_b32 v6, v6, v19\nv_lshlrev_b32 v6, 4, v6")
        a("v_mul_u32_u24 v7, 7168, v7\nv_add3_u32 v%d, v7, v6, s20" % v)
    a("s_cmp_eq_u32 s19, 0\ns_cbranch_scc0 K3_LODD")
    a("s_lshl_b32 s21, s14, 8\ns_lshl_b32 s22, s18, 17\ns_add_u32 s21, s21, s22")
    a("v_lshlrev_b32 v6, 12, v3\nv_lshlrev_b32 v7, 6, v2\nv_add3_u32 v6, v6, v7, s21")
    a("v_lshlrev_b32 v7, 4, v4\nv_xor_b32 v19, 32, v7")
    for b in range(8):
        a("v_add_u32 v%d, v6, v%d\nv_add_u32 v%d, %d, v%d" % (VO + b, 7 if b % 2 == 0 else 19, VO + b, b * 16384, VO + b))
    for i in range(3): wpiece(VO + 8 + i, i)
    a("s_branch K3_LJOIN")
    a("K3_LODD:")
    for i in range(11): wpiece(VO + i, 3 + i)
    a("K3_LJOIN:")
    a("v_lshlrev_b32 v6, 10, v2\nv_lshlrev_b32 v7, 6, v3\nv_lshlrev_b32 v19, 3, v4\nv_add3_u32 v6, v6, v7, v19")
    a("s_lshl_b32 s21, s17, 8\nv_add_u32 v6, s21, v6\nv_lshlrev_b32 v7, 5, v5")
    a("v_add_u32 v20, v6, v7\nv_sub_u32 v21, v6, v7\nv_add_u32 v21, 32, v21")
    a("v_lshlrev_b32 v6, 2, v2\nv_add_u32 v6, v6, v3\nv_mul_u32_u24 v6, 448, v6\nv_add_u32 v6, v6, v19")
    a("s_lshl_b32 s21, s17, 2\ns_min_u32 s21, s21, 10\ns_lshl_b32 s23, s21, 5\ns_add_u32 s23, s23, 8192\nv_add_u32 v6, s23, v6")
    a("v_add_u32 v22, v6, v7\nv_sub_u32 v23, v6, v7")
    a("s_waitcnt lgkmcnt(0)")
    a("s_add_u32 s8, s12, 0x%x\ns_addc_u32 s9, s13, 0" % HT)
    a.srd(40, 4, 7340032)
    a("s_cmp_eq_u32 s19, 0")
    a("s_cselect_b32 s36, s8, s4\ns_cselect_b32 s37, s9, s5\ns_and_b32 s37, s37, 0xffff")
    a("s_cmp_eq_u32 s19, 0")
    a("s_mov_b32 s38, %d\ns_cselect_b32 s38, 0x%x, s38\ns_mov_b32 s39, 0x00020000" % (7340032, MB4))
    a("s_mov_b32 s26, %d\ns_cselect_b32 s26, %d, s26" % (64 * 7168, 64 * 4096))
    a("s_mov_b32 s24, 0\ns_mov_b32 s25, 0")
    a("s_mul_i32 s27, s17, 11264\ns_mov_b32 s28, s27")
    a("s_add_u32 s29, s27, %d" % (K3_R * K3_STG))
    a.srd(44, 12, 0x4000000)
    a("s_lshl_b32 s22, s2, 8\ns_add_u32 s22, s22, 0x%x\nv_mov_b32 v6, s22\nv_mov_b32 v7, 0" % FLG)
    AC = 24
    for i in range(8): a("v_mov_b32 v%d, 0" % (AC + i))
    a("s_mov_b32 s33, 0x%x" % ONES)
    def dma(i):
        if i == 0: a("s_mov_b32 m0, s28")
        else: a("s_add_u32 m0, m0, 1024")
        a("s_nop 0")
        if i < 8: a("buffer_load_dwordx4 v%d, s[36:39], s24 offen lds" % (VO + i))
        else: a("buffer_load_dwordx4 v%d, s[40:43], s25 offen lds" % (VO + i))
    def dma_adv():
        a("s_add_u32 s24, s24, s26\ns_add_u32 s25, s25, %d" % (64 * 7168))
        a("s_add_u32 s28, s28, %d\ns_cmp_ge_u32 s28, s29\ns_cselect_b32 s28, s27, s28" % K3_STG)
    a("s_cmp_eq_u32 s17, 0\ns_cbranch_scc0 K3_NOFLAG\ns_mov_b64 exec, 1")
    a("buffer_store_dword v7, v6, s[44:47], 0 offen\ns_mov_b64 exec, -1")
    a("K3_NOFLAG:")
    for n in range(K3_R):
        for i in range(11): dma(i)
        dma_adv()
    stamp(a, 1)
    SD = 32
    def st_reads(sub):
        r = SD + 24 * sub
        for h in range(2):
            a("ds_read_b64_tr_b16 %s, v20 offset:%d" % (vr(r + 4 * h, 2), sub * K3_SUB + h * 4096))
            a("ds_read_b64_tr_b16 %s, v21 offset:%d" % (vr(r + 4 * h + 2, 2), sub * K3_SUB + h * 4096))
        for h in range(2):
            for i in range(4):
                a("ds_read_b64_tr_b16 %s, v%d offset:%d" % (vr(r + 8 + 8 * h + 2 * i, 2), 22 + (i & 1), sub * K3_SUB + h * 7168 + 32 * i))
    def st_ops(sub):
        r = SD + 24 * sub
        ops = []
        for h in range(2):
            for d in range(2):
                for s in range(2):
                    x = r + 4 * h + 2 * s + d
                    ops.append("v_dot2_f32_bf16 v%d, v%d, s33, v%d" % (AC + s, x, AC + s))
                    ops.append("v_dot2_f32_bf16 v%d, v%d, v%d, v%d" % (AC + 2 + s, x, x, AC + 2 + s))
        for h in range(2):
            for d in range(2):
                for i in range(4):
                    ops.append("v_dot2_f32_bf16 v%d, v%d, s33, v%d" % (AC + 4 + i, r + 8 + 8 * h + 2 * i + d, AC + 4 + i))
        return ops
    def st_adv():
        a("s_add_u32 s34, s34, 1\ns_cmp_eq_u32 s34, %d\ns_cselect_b32 s35, s31, s30\ns_cselect_b32 s34, 0, s34" % K3_R)
        for v in range(20, 24): a("v_add_u32 v%d, s35, v%d" % (v, v))
    def loader_iter(wait, with_dma):
        a("s_waitcnt vmcnt(%d)\ns_barrier" % wait)
        st_reads(0)
        if with_dma: dma(0)
        st_reads(1)
        o0, o1 = st_ops(0), st_ops(1)
        if with_dma: dma(1)
        a("s_waitcnt lgkmcnt(12)")
        k = 2
        for j in range(0, 32, 8):
            for o in o0[j:j + 8]: a(o)
            if with_dma: dma(k); k += 1
        a("s_waitcnt lgkmcnt(0)")
        for j in range(0, 32, 7):
            for o in o1[j:j + 7]: a(o)
            if with_dma and k < 11: dma(k); k += 1
        assert (not with_dma) or k == 11
        if with_dma: dma_adv()
        st_adv()
    a("s_mov_b32 s34, 0")
    loader_iter(22, False)
    a("s_mov_b32 s32, 1")
    a("K3_LLOOP:")
    loader_iter(11, True)
    a("s_add_u32 s32, s32, 1\ns_cmp_lt_u32 s32, %d\ns_cbranch_scc1 K3_LLOOP" % (K3_NST - K3_R + 1))
    loader_iter(11, False)
    loader_iter(0, False)
    stamp(a, 2)
    a("s_nop 2")
    for sw in ("v_permlane32_swap_b32", "v_permlane16_swap_b32"):
        for i in range(8): a("v_mov_b32 v%d, v%d" % (SD + i, AC + i))
        a("s_nop 0")
        for i in range(8): a("%s v%d, v%d" % (sw, AC + i, SD + i))
        for i in range(8): a("v_add_f32 v%d, v%d, v%d" % (AC + i, AC + i, SD + i))
    for s in range(2):
        stats_finish(a, AC + s, AC + 2 + s, SD, SD + 1, 1024)
        t = SD + 4 + 2 * s
        a("v_and_b32 v%d, 0xffff0000, v%d\nv_rcp_f32 v%d, v%d" % (t + 1, AC + s, t + 1, t + 1))
        a("v_lshlrev_b32 v%d, 16, v%d\nv_xor_b32 v%d, 0x80000000, v%d" % (t, AC + s, t, t))
    a("v_lshlrev_b32 v6, 3, v1\ns_lshl_b32 s22, s17, 8\ns_add_u32 s22, s22, %d\nv_add_u32 v6, s22, v6" % K3_TAB)
    a("v_lshlrev_b32 v7, 2, v1\ns_lshl_b32 s22, s21, 6\ns_add_u32 s22, s22, %d\nv_add_u32 v7, s22, v7" % K3_CS)
    a("s_mov_b64 exec, 0xffff")
    a("ds_write_b64 v6, %s\nds_write_b64 v6, %s offset:128" % (vr(SD + 4, 2), vr(SD + 6, 2)))
    for i in range(4): a("ds_write_b32 v7, v%d offset:%d" % (AC + 4 + i, 64 * i))
    a("s_mov_b64 exec, -1")
    a("s_waitcnt lgkmcnt(0)\ns_barrier")
    stamp(a, 3)
    stamp_store(a, 2, 16, 8, 12)
    a("s_endpgm")
    a("K3_CONS:")
    a("s_setprio 2")
    a("s_and_b32 s17, s16, 1\ns_lshr_b32 s18, s16, 1")
    XE, XO, WA, WB, WC = 8, 9, 10, 11, 12
    a("v_lshlrev_b32 v6, 10, v2\nv_lshlrev_b32 v7, 6, v3\nv_lshlrev_b32 v13, 3, v4\nv_add3_u32 v6, v6, v7, v13")
    a("s_lshl_b32 s21, s17, 9\nv_add_u32 v6, s21, v6\nv_lshlrev_b32 v7, 5, v5")
    a("v_add_u32 v%d, v6, v7\nv_sub_u32 v%d, v6, v7\nv_add_u32 v%d, 32, v%d" % (XE, XO, XO, XO))
    a("v_lshlrev_b32 v6, 2, v2\nv_add_u32 v6, v6, v3\nv_mul_u32_u24 v6, 448, v6\nv_add_u32 v6, v6, v13\nv_add_u32 v6, 8192, v6")
    a("s_lshl_b32 s21, s18, 8\nv_add_u32 v14, s21, v6\nv_add_u32 v%d, v14, v7\nv_sub_u32 v%d, v14, v7" % (WA, WB))
    a("s_add_u32 s21, s18, 6\nv_xor_b32 v14, s21, v5\nv_lshlrev_b32 v14, 5, v14\nv_add_u32 v%d, v6, v14" % WC)
    FS = [16, 60]; ACC = 104
    def reads(st, sub):
        r = []
        f = FS[st]
        for i in range(4):
            for h in range(2):
                r.append("ds_read_b64_tr_b16 %s, v%d offset:%d" % (vr(f + 4 * i + 2 * h, 2), XE + (i & 1), sub * K3_SUB + h * 4096 + (i >> 1) * 256))
        for i in range(7):
            for h in range(2):
                if i < 6: r.append("ds_read_b64_tr_b16 %s, v%d offset:%d" % (vr(f + 16 + 4 * i + 2 * h, 2), WA + (i & 1), sub * K3_SUB + h * 7168 + 32 * i))
                else: r.append("ds_read_b64_tr_b16 %s, v%d offset:%d" % (vr(f + 16 + 4 * i + 2 * h, 2), WC, sub * K3_SUB + h * 7168))
        return r
    def phase(st, rds, first=False, extra=()):
        f = FS[st]; rds = list(rds) + list(extra); k = 0
        for i in range(7):
            for s in range(4):
                d = vr(ACC + 16 * i + 4 * s, 4)
                a("v_mfma_f32_16x16x32_bf16 %s, %s, %s, %s" % (d, vr(f + 16 + 4 * i, 4), vr(f + 4 * s, 4), "0" if first else d))
                if k < len(rds): a(rds[k]); k += 1
        assert k == len(rds)
    adv = ["v_add_u32 v%d, s35, v%d" % (v, v) for v in range(XE, WC + 1)]
    def sadv():
        a("s_add_u32 s34, s34, 1\ns_cmp_eq_u32 s34, %d\ns_cselect_b32 s35, s31, s30\ns_cselect_b32 s34, 0, s34" % K3_R)
    a("s_mov_b32 s34, 0\ns_mov_b32 s32, 1")
    a("s_waitcnt lgkmcnt(0)\ns_barrier")
    stamp(a, 1)
    if gen.STAMP: a("s_waitcnt lgkmcnt(0)")
    for r in reads(0, 0): a(r)
    sadv()
    a("s_waitcnt lgkmcnt(0)")
    phase(0, reads(1, 1), first=True, extra=adv)
    a("s_waitcnt lgkmcnt(0)\ns_barrier")
    phase(1, reads(0, 0))
    a("K3_CLOOP:")
    sadv()
    a("s_waitcnt lgkmcnt(0)")
    phase(0, reads(1, 1), extra=adv)
    a("s_waitcnt lgkmcnt(0)\ns_barrier")
    phase(1, reads(0, 0))
    a("s_add_u32 s32, s32, 1\ns_cmp_lt_u32 s32, %d\ns_cbranch_scc1 K3_CLOOP" % (K3_NST - 1))
    a("s_waitcnt lgkmcnt(0)")
    phase(0, reads(1, 1))
    a("s_waitcnt lgkmcnt(0)")
    phase(1, [])
    stamp(a, 2)
    a("s_add_u32 s8, s12, 0x%x\ns_addc_u32 s9, s13, 0" % H1)
    a.srd(36, 8, H1_BYTES)
    a("v_and_b32 v6, 15, v1\nv_lshlrev_b32 v6, 3, v6\ns_lshl_b32 s21, s17, 9\ns_add_u32 s21, s21, %d\nv_add_u32 v6, s21, v6" % K3_TAB)
    a("v_lshlrev_b32 v7, 4, v2\ns_lshl_b32 s21, s18, 9\ns_add_u32 s21, s21, %d\nv_add_u32 v8, s21, v7" % K3_CS)
    a("s_lshl_b32 s21, s18, 6\ns_add_u32 s21, s21, %d\nv_add_u32 v9, s21, v7" % (K3_CS + 384))
    a("s_mul_i32 s21, s14, 112\ns_mul_i32 s22, s15, 7\ns_add_u32 s21, s21, s22\ns_lshl_b32 s21, s21, 13\ns_lshl_b32 s22, s17, 12\ns_add_u32 s21, s21, s22")
    a("s_lshl_b32 s22, s18, 15\ns_add_u32 s22, s22, s21\nv_lshlrev_b32 v10, 4, v1\nv_add_u32 v11, s22, v10")
    a("s_lshl_b32 s22, s18, 3\ns_add_u32 s22, s22, s21\ns_add_u32 s22, s22, %d\nv_add_u32 v12, s22, v10" % (3 * 8192))
    a("s_mov_b32 s24, 0x%x\ns_mov_b32 s25, s24\ns_mov_b32 s26, 1.0\ns_mov_b32 s27, 1.0" % f32bits(-LOG2E))
    a("s_mov_b32 s28, 8192\ns_mov_b32 s29, 16384")
    a("s_barrier")
    stamp(a, 3)
    RT = 16; CSR = 24
    for s in range(4): a("ds_read_b64 %s, v6 offset:%d" % (vr(RT + 2 * s, 2), 128 * s))
    for i in range(6): a("ds_read_b128 %s, v8 offset:%d" % (vr(CSR + 4 * i, 4), 64 * i))
    a("ds_read_b128 %s, v9" % vr(CSR + 24, 4))
    a("s_waitcnt lgkmcnt(0)")
    T = 56; PK = 72
    def silu_tile(i, s, dst):
        z = ACC + 16 * i + 4 * s; rt = vr(RT + 2 * s, 2)
        for p in range(2):
            a("v_pk_fma_f32 %s, %s, %s, %s op_sel_hi:[1,0,1]" % (vr(z + 2 * p, 2), vr(CSR + 4 * i + 2 * p, 2), rt, vr(z + 2 * p, 2)))
        for p in range(2):
            a("v_pk_mul_f32 %s, %s, %s op_sel:[0,1] op_sel_hi:[1,1]" % (vr(z + 2 * p, 2), vr(z + 2 * p, 2), rt))
        for p in range(2):
            a("v_pk_mul_f32 %s, %s, s[24:25]" % (vr(T + 2 * p, 2), vr(z + 2 * p, 2)))
        for r in range(4): a("v_exp_f32 v%d, v%d" % (T + r, T + r))
        a("s_nop 0")
        for p in range(2):
            a("v_pk_add_f32 %s, %s, s[26:27]" % (vr(T + 2 * p, 2), vr(T + 2 * p, 2)))
        for r in range(4): a("v_rcp_f32 v%d, v%d" % (T + r, T + r))
        a("s_nop 0")
        for p in range(2):
            a("v_pk_mul_f32 %s, %s, %s" % (vr(z + 2 * p, 2), vr(z + 2 * p, 2), vr(T + 2 * p, 2)))
        a("v_cvt_pk_bf16_f32 v%d, v%d, v%d\nv_cvt_pk_bf16_f32 v%d, v%d, v%d" % (dst, z, z + 1, dst + 1, z + 2, z + 3))
    n = 0
    for pr in range(3):
        for s in range(4):
            d = PK + 4 * (n % 8); n += 1
            silu_tile(2 * pr, s, d); silu_tile(2 * pr + 1, s, d + 2)
            a("buffer_store_dwordx4 %s, v11, s[36:39], %s offen offset:%d" % (vr(d, 4), ["0", "s28", "s29"][pr], 1024 * s))
    for s in range(4):
        d = PK + 4 * (n % 8); n += 1
        silu_tile(6, s, d)
        a("buffer_store_dwordx2 %s, v12, s[36:39], 0 offen offset:%d" % (vr(d, 2), 1024 * s))
    stamp(a, 4)
    if gen.STAMP: a("s_waitcnt vmcnt(0)")
    stamp(a, 5)
    stamp_store(a, 2, 16, 8, 12)
    a("K3_END:\ns_endpgm")

K4_SUB = 16384; K4_STG = 32768; K4_R = 4
K4_RES = K4_STG * K4_R
K4_LDS = K4_RES + 16384
K4_NST = 28

def gen_k4(a):
    a.begin("k4_kernel", 256, 512, K4_LDS, vgpr=192, sgpr=96)
    a("s_cmp_ge_u32 s2, 256\ns_cbranch_scc1 K4_END")
    for i in range(8): stamp(a, i)
    a("s_load_dwordx4 s[4:7], s[0:1], 64\ns_load_dwordx2 s[12:13], s[0:1], 88")
    a("s_and_b32 s8, s2, 7\ns_lshr_b32 s9, s2, 3")
    a("s_and_b32 s19, s8, 1")
    a("s_lshr_b32 s14, s8, 1\ns_lshl_b32 s14, s14, 2\ns_and_b32 s15, s9, 3\ns_add_u32 s14, s14, s15")
    a("s_lshr_b32 s15, s9, 2")
    a("v_lshrrev_b32 v6, 6, v0")
    lane_parts(a)
    a("v_readfirstlane_b32 s16, v6")
    a("s_mov_b32 s30, %d\ns_mov_b32 s31, %d" % (K4_STG, -(K4_R - 1) * K4_STG & 0xffffffff))
    a("s_cmp_lt_u32 s16, 4\ns_cbranch_scc1 K4_CONS")
    a("s_sub_u32 s17, s16, 4\ns_lshr_b32 s18, s17, 1\ns_and_b32 s20, s17, 1")
    VO = 8
    a("v_lshlrev_b32 v7, 4, v4\nv_xor_b32 v16, 32, v7")
    a("s_cmp_eq_u32 s20, 0\ns_cbranch_scc0 K4_LODD")
    a("s_mul_i32 s21, s14, 112\ns_mul_i32 s22, s19, 56\ns_add_u32 s21, s21, s22\ns_add_u32 s21, s21, s18\ns_lshl_b32 s21, s21, 13")
    a("v_lshlrev_b32 v6, 4, v1\nv_add_u32 v6, s21, v6")
    for i in range(8): a("v_add_u32 v%d, %d, v6" % (VO + i, 1024 * i))
    a("s_branch K4_LJOIN")
    a("K4_LODD:")
    a("s_mul_i32 s21, s19, 1792\ns_lshl_b32 s22, s18, 5\ns_add_u32 s21, s21, s22\ns_lshl_b32 s21, s21, 11\ns_lshl_b32 s22, s15, 8\ns_add_u32 s21, s21, s22")
    a("v_lshlrev_b32 v6, 11, v3\nv_lshlrev_b32 v17, 6, v2\nv_add3_u32 v6, v6, v17, s21")
    for b in range(8):
        a("v_add_u32 v%d, v6, v%d\nv_add_u32 v%d, %d, v%d" % (VO + b, 7 if b % 2 == 0 else 16, VO + b, b * 8192, VO + b))
    a("K4_LJOIN:")
    a("s_lshl_b32 s21, s15, 7\ns_lshl_b32 s22, s19, 6\ns_add_u32 s21, s21, s22\ns_lshl_b32 s22, s17, 4\ns_add_u32 s21, s21, s22\ns_lshl_b32 s21, s21, 12")
    a("s_lshl_b32 s22, s14, 8\ns_add_u32 s21, s21, s22")
    a("v_lshlrev_b32 v6, 12, v3\nv_lshlrev_b32 v17, 6, v2\nv_add3_u32 v6, v6, v17, s21")
    a("v_add_u32 v18, v6, v7\nv_add_u32 v19, v6, v16\nv_add_u32 v19, 16384, v19")
    a("s_waitcnt lgkmcnt(0)")
    a("s_add_u32 s8, s12, 0x%x\ns_addc_u32 s9, s13, 0" % H1)
    a("s_add_u32 s10, s12, 0x%x\ns_addc_u32 s11, s13, 0" % HT)
    a.srd(40, 10, MB4)
    a("s_cmp_eq_u32 s20, 0")
    a("s_cselect_b32 s36, s8, s4\ns_cselect_b32 s37, s9, s5\ns_and_b32 s37, s37, 0xffff")
    a("s_cmp_eq_u32 s20, 0")
    a("s_mov_b32 s38, %d\ns_cselect_b32 s38, %d, s38\ns_mov_b32 s39, 0x00020000" % (7340032, H1_BYTES))
    a("s_mov_b32 s26, %d\ns_cselect_b32 s26, %d, s26" % (64 * 2048, 16384))
    a("s_mov_b32 s24, 0\ns_lshl_b32 s27, s17, 13\ns_mov_b32 s28, s27\ns_add_u32 s29, s27, %d" % (K4_R * K4_STG))
    def stage():
        for i in range(8):
            a("s_mov_b32 m0, s28" if i == 0 else "s_add_u32 m0, m0, 1024")
            a("s_nop 0")
            a("buffer_load_dwordx4 v%d, s[36:39], s24 offen lds" % (VO + i))
        a("s_add_u32 s24, s24, s26")
        a("s_add_u32 s28, s28, %d\ns_cmp_ge_u32 s28, s29\ns_cselect_b32 s28, s27, s28" % K4_STG)
    stage()
    stage()
    a("s_lshl_b32 s21, s17, 12\ns_add_u32 m0, s21, %d\ns_mov_b32 s22, 32768" % K4_RES)
    a("buffer_load_dwordx4 v18, s[40:43], 0 offen lds\ns_add_u32 m0, m0, 1024\ns_nop 0")
    a("buffer_load_dwordx4 v19, s[40:43], 0 offen lds\ns_add_u32 m0, m0, 1024\ns_nop 0")
    a("buffer_load_dwordx4 v18, s[40:43], s22 offen lds\ns_add_u32 m0, m0, 1024\ns_nop 0")
    a("buffer_load_dwordx4 v19, s[40:43], s22 offen lds")
    stage()
    stage()
    stamp(a, 1)
    a("s_waitcnt vmcnt(28)\ns_barrier")
    a("s_waitcnt vmcnt(20)\ns_barrier")
    stage()
    a("s_mov_b32 s32, 2")
    a("K4_LLOOP:")
    a("s_waitcnt vmcnt(16)\ns_barrier")
    stage()
    a("s_add_u32 s32, s32, 1\ns_cmp_lt_u32 s32, %d\ns_cbranch_scc1 K4_LLOOP" % (K4_NST - K4_R + 1))
    a("s_waitcnt vmcnt(16)\ns_barrier")
    a("s_waitcnt vmcnt(8)\ns_barrier")
    a("s_waitcnt vmcnt(0)\ns_barrier")
    stamp(a, 2)
    stamp_store(a, 3, 16, 8, 12)
    a("s_endpgm")
    a("K4_CONS:")
    a("s_setprio 2")
    a("s_and_b32 s17, s16, 1\ns_lshr_b32 s18, s16, 1")
    HA, WK0, WK1, WS0, WS1 = 8, 9, 10, 11, 12
    a("v_lshlrev_b32 v%d, 4, v1\ns_lshl_b32 s21, s17, 12\nv_add_u32 v%d, s21, v%d" % (HA, HA, HA))
    a("v_lshlrev_b32 v6, 10, v2\nv_lshlrev_b32 v7, 6, v3\nv_lshlrev_b32 v13, 3, v4\nv_add3_u32 v6, v6, v7, v13")
    a("v_lshlrev_b32 v7, 5, v5\nv_add_u32 v14, v6, v7\nv_sub_u32 v15, v6, v7\nv_add_u32 v15, 32, v15")
    a("s_lshl_b32 s21, s18, 8\ns_add_u32 s21, s21, 8192\ns_lshl_b32 s22, s19, 9\ns_add_u32 s23, s21, s22")
    a("v_add_u32 v%d, s23, v14\nv_add_u32 v%d, s23, v15" % (WK0, WK1))
    a("s_xor_b32 s22, s22, 512\ns_add_u32 s23, s21, s22")
    a("v_add_u32 v%d, s23, v14\nv_add_u32 v%d, s23, v15" % (WS0, WS1))
    FS = [16, 48]; ACC = 80
    def reads(st, sub):
        r = []; f = FS[st]
        for i in range(4):
            r.append("ds_read_b128 %s, v%d offset:%d" % (vr(f + 4 * i, 4), HA, sub * K4_SUB + 1024 * i))
        for i in range(4):
            for h in range(2):
                r.append("ds_read_b64_tr_b16 %s, v%d offset:%d" % (vr(f + 16 + 4 * i + 2 * h, 2), WK0 + i, sub * K4_SUB + h * 4096))
        return r
    def phase(st, rds, first=False, extra=()):
        f = FS[st]; rds = list(rds); extra = list(extra); k = 0
        for i in range(4):
            for s in range(4):
                d = vr(ACC + 16 * i + 4 * s, 4)
                a("v_mfma_f32_16x16x32_bf16 %s, %s, %s, %s" % (d, vr(f + 16 + 4 * i, 4), vr(f + 4 * s, 4), "0" if first else d))
                if k < len(rds): a(rds[k]); k += 1
                elif extra:
                    a(extra.pop(0))
                    if len(extra) > 15 - (4 * i + s): a(extra.pop(0))
        assert k == len(rds) and not extra
    adv = ["v_add_u32 v%d, s35, v%d" % (v, v) for v in range(HA, WS1 + 1)]
    def sadv():
        a("s_add_u32 s34, s34, 1\ns_cmp_eq_u32 s34, %d\ns_cselect_b32 s35, s31, s30\ns_cselect_b32 s34, 0, s34" % K4_R)
    a("s_mov_b32 s34, 0\ns_mov_b32 s32, 1")
    a("s_waitcnt lgkmcnt(0)\ns_barrier")
    stamp(a, 1)
    if gen.STAMP: a("s_waitcnt lgkmcnt(0)")
    for r in reads(0, 0): a(r)
    sadv()
    a("s_waitcnt lgkmcnt(0)")
    phase(0, reads(1, 1), first=True, extra=adv)
    a("s_waitcnt lgkmcnt(0)\ns_barrier")
    phase(1, reads(0, 0))
    a("K4_CLOOP:")
    sadv()
    a("s_waitcnt lgkmcnt(0)")
    phase(0, reads(1, 1), extra=adv)
    a("s_waitcnt lgkmcnt(0)\ns_barrier")
    phase(1, reads(0, 0))
    a("s_add_u32 s32, s32, 1\ns_cmp_lt_u32 s32, %d\ns_cbranch_scc1 K4_CLOOP" % (K4_NST - 1))
    a("s_waitcnt lgkmcnt(0)")
    phase(0, reads(1, 1))
    a("s_waitcnt lgkmcnt(0)")
    phase(1, [])
    stamp(a, 2)
    a.srd(36, 12, 0x4000000)
    a.srd(40, 6, MB4)
    a("s_lshl_b32 s21, s2, 15\ns_lshl_b32 s22, s16, 13\ns_add_u32 s21, s21, s22\ns_add_u32 s21, s21, 0x%x" % PX)
    a("v_lshlrev_b32 v8, 4, v1\nv_add_u32 v9, s21, v8")
    a("s_xor_b32 s21, s21, 0x8000\nv_add_u32 v10, s21, v8\ns_mov_b32 s22, 4096")
    a("s_lshl_b32 s21, s18, 13\ns_lshl_b32 s23, s17, 9\ns_add_u32 s21, s21, s23\ns_add_u32 s21, s21, %d" % K4_RES)
    a("v_add_u32 v14, s21, v14\nv_add_u32 v15, s21, v15")
    for j in range(8):
        a("buffer_store_dwordx4 %s, v9, s[36:39], %s offen offset:%d sc1" % (vr(ACC + 32 + 4 * j, 4), "0" if j < 4 else "s22", 1024 * (j % 4)))
    RS = 16
    for i in range(2):
        for s in range(4):
            a("ds_read_b64_tr_b16 %s, v%d offset:%d" % (vr(RS + 8 * i + 2 * s, 2), 14 + (s & 1), 4096 * i + 256 * (s >> 1)))
    a("v_and_b32 v11, 15, v1\nv_lshlrev_b32 v11, 11, v11\nv_lshlrev_b32 v12, 5, v5\nv_lshrrev_b32 v13, 1, v2\nv_lshlrev_b32 v13, 4, v13\nv_add3_u32 v11, v11, v12, v13")
    a("s_lshl_b32 s21, s14, 18\ns_lshl_b32 s23, s17, 17\ns_add_u32 s21, s21, s23\ns_lshl_b32 s23, s15, 8\ns_add_u32 s21, s21, s23")
    a("s_lshl_b32 s23, s19, 7\ns_add_u32 s21, s21, s23\ns_lshl_b32 s23, s18, 6\ns_add_u32 s21, s21, s23\nv_add_u32 v11, s21, v11")
    a("s_lshl_b32 s21, s2, 8\ns_add_u32 s21, s21, 0x%x\nv_mov_b32 v12, s21\ns_xor_b32 s21, s21, 256\nv_mov_b32 v13, s21\nv_mov_b32 v32, 1" % FLG)
    a("s_waitcnt vmcnt(0)\ns_barrier")
    stamp(a, 3)
    a("s_cmp_eq_u32 s16, 0\ns_cbranch_scc0 K4_WAITED")
    a("s_mov_b64 exec, 1")
    a("buffer_store_dword v32, v12, s[36:39], 0 offen sc1")
    a("s_mov_b32 s23, 0")
    a("K4_POLL:")
    a("buffer_load_dword v33, v13, s[36:39], 0 offen sc1\ns_waitcnt vmcnt(0)")
    a("v_readfirstlane_b32 s21, v33\ns_nop 0\ns_cmp_eq_u32 s21, 1\ns_cbranch_scc1 K4_GOT\ns_sleep 1\ns_add_u32 s23, s23, 1\ns_cmp_lt_u32 s23, 0x400000\ns_cbranch_scc1 K4_POLL")
    a("K4_GOT:\ns_mov_b64 exec, -1")
    a("K4_WAITED:")
    a("s_barrier")
    stamp(a, 4)
    PO = 48
    for j in range(8):
        a("buffer_load_dwordx4 %s, v10, s[36:39], %s offen offset:%d sc1" % (vr(PO + 4 * j, 4), "0" if j < 4 else "s22", 1024 * (j % 4)))
    a("s_mov_b32 s33, 0xffff0000\ns_mov_b32 s24, 32768\ns_mov_b32 s25, 65536\ns_mov_b32 s26, 98304")
    a("s_waitcnt lgkmcnt(0)")
    T = 112; OUT = 144
    for s in range(4):
        a("s_waitcnt vmcnt(%d)" % (3 - s + s))
        for i in range(2):
            z = ACC + 16 * i + 4 * s; p = PO + 16 * i + 4 * s; t = T + 8 * i; r = RS + 8 * i + 2 * s
            for e in range(4): a("v_add_f32 v%d, v%d, v%d" % (z + e, z + e, p + e))
            a("v_cvt_pk_bf16_f32 v%d, v%d, v%d\nv_cvt_pk_bf16_f32 v%d, v%d, v%d" % (z, z, z + 1, z + 2, z + 2, z + 3))
            a("v_and_b32 v%d, s33, v%d\nv_lshlrev_b32 v%d, 16, v%d" % (z + 1, z, z, z))
            a("v_and_b32 v%d, s33, v%d\nv_lshlrev_b32 v%d, 16, v%d" % (z + 3, z + 2, z + 2, z + 2))
            a("v_lshlrev_b32 v%d, 16, v%d\nv_and_b32 v%d, s33, v%d" % (t, r, t + 1, r))
            a("v_lshlrev_b32 v%d, 16, v%d\nv_and_b32 v%d, s33, v%d" % (t + 2, r + 1, t + 3, r + 1))
            for e in range(4): a("v_add_f32 v%d, v%d, v%d" % (z + e, z + e, t + e))
            o = OUT + 4 * s + 2 * i
            a("v_cvt_pk_bf16_f32 v%d, v%d, v%d\nv_cvt_pk_bf16_f32 v%d, v%d, v%d" % (o, z, z + 1, o + 1, z + 2, z + 3))
        o = OUT + 4 * s
        a("s_nop 1")
        a("v_permlane16_swap_b32 v%d, v%d\nv_permlane16_swap_b32 v%d, v%d" % (o, o + 2, o + 1, o + 3))
        a("buffer_store_dwordx4 %s, v11, s[40:43], %s offen" % (vr(o, 4), ["0", "s24", "s25", "s26"][s]))
    stamp(a, 5)
    if gen.STAMP: a("s_waitcnt vmcnt(0)")
    stamp(a, 6)
    stamp_store(a, 3, 16, 8, 12)
    a("K4_END:\ns_endpgm")

if __name__ == "__main__":
    gen.STAMP = "s_memrealtime" if "--stamp" in sys.argv else ("s_memtime" if "--stampc" in sys.argv else False)
    a = Asm()
    gen_k1(a)
    gen_k2(a, prefetch="--nopf" not in sys.argv)
    gen_k3(a)
    if "--no4" not in sys.argv: gen_k4(a)
    hdr = open("sequential_preLN__ssm_conv_h3__dense_activation_silu__prompt.s.ref").read().split("; Override launch")[0]
    sys.stdout.write(a.text(hdr))
```

```python
import sys
from asmlib import Asm

KVB = 0x000000
XB  = 0x400000
ST1 = 0x800000
HT  = 0xC00000
H1  = 0x1000000
H1_BYTES = 16 * 112 * 8 * 1024
PX  = 0x2000000
FLG = 0x2800000
MB4 = 0x400000
W1P = 0x3000000
W2P = 0x3800000
WS_BYTES = 0x4000000
CNT = 0x980000
XSP = 0x9A0000
OPT = set()
ONES = 0x3f803f80

def vr(b, n):
    return "v[%d:%d]" % (b, b + n - 1) if n > 1 else "v%d" % b
def sr(b, n):
    return "s[%d:%d]" % (b, b + n - 1) if n > 1 else "s%d" % b

STAMP = False
STB = 0x4000000
def stamp(a, i):
    if STAMP: a("%s s[%d:%d]" % (STAMP, 70 + 2 * i, 71 + 2 * i))
def stamp_store(a, kidx, wavesgpr, nw, ws_lo):
    if not STAMP: return
    a("s_waitcnt lgkmcnt(0)")
    a("s_mul_i32 s86, s2, %d\ns_add_u32 s86, s86, s%d\ns_lshl_b32 s86, s86, 5\ns_add_u32 s86, s86, 0x%x" % (nw, wavesgpr, STB + kidx * 0x100000))
    a("s_mov_b64 exec, 1")
    a("v_mov_b32 v1, s86")
    for i in range(8): a("v_mov_b32 v%d, s%d" % (2 + i, 70 + 2 * i))
    a("global_store_dwordx4 v1, v[2:5], s[%d:%d]\nglobal_store_dwordx4 v1, v[6:9], s[%d:%d] offset:16" % (ws_lo, ws_lo + 1, ws_lo, ws_lo + 1))

def stats_finish(a, S, Q, T1, T2, n):
    a("v_mul_f32 v%d, 0x%x, v%d" % (S, f32bits(1.0 / n), S))
    a("v_mul_f32 v%d, 0x%x, v%d" % (Q, f32bits(1.0 / n), Q))
    a("v_fma_f32 v%d, -v%d, v%d, v%d" % (Q, S, S, Q))
    a("v_max_f32 v%d, 0, v%d" % (Q, Q))
    a("v_cvt_pk_bf16_f32 v%d, v%d, v%d" % (T1, Q, Q))
    a("v_lshlrev_b32 v%d, 16, v%d" % (T1, T1))
    a("v_add_f32 v%d, 0x%x, v%d" % (T1, f32bits(1e-5), T1))
    a("v_cvt_pk_bf16_f32 v%d, v%d, v%d" % (T1, T1, T1))
    a("v_lshlrev_b32 v%d, 16, v%d" % (T1, T1))
    a("v_sqrt_f32 v%d, v%d" % (T1, T1))
    a("s_nop 0")
    a("v_cvt_pk_bf16_f32 v%d, v%d, v%d" % (S, S, T1))

import struct
def f32bits(x):
    return struct.unpack("<I", struct.pack("<f", x))[0]

def gen_k1(a):
    a.begin("k1_kernel", 256, 256, 512, vgpr=184, sgpr=64)
    a("s_cmp_ge_u32 s2, 256\ns_cbranch_scc1 K1_END")
    a("s_load_dwordx4 s[4:7], s[0:1], 0\ns_load_dwordx4 s[24:27], s[0:1], 16\ns_load_dwordx2 s[28:29], s[0:1], 88\ns_load_dwordx2 s[44:45], s[0:1], 32")
    a("s_lshl_b32 s3, s2, 14")
    a("v_lshlrev_b32 v1, 3, v0\nv_add_u32 v1, s3, v1")
    a("v_add_u32 v2, 0xffffe800, v1")
    a("v_add_u32 v3, 0xfffff800, v1")
    a("v_lshlrev_b32 v4, 5, v0")
    a("s_mov_b32 s30, 4096\ns_mov_b32 s31, 8192\ns_mov_b32 s32, 12288")
    a("s_waitcnt lgkmcnt(0)")
    a.srd(8, 4, MB4); a.srd(12, 6, MB4); a.srd(16, 24, MB4); a.srd(20, 26, 8192); a.srd(36, 28, 0x1000000)
    KR, VR, XR, SH = 10, 32, 48, 64
    NT = "" if "nont" in OPT else " nt"
    def rowload(dst, srd, r):
        so = ["0", "s30", "s31", "s32"][r // 2]
        a("buffer_load_dwordx2 %s, v1, %s, %s offen offset:%d%s" % (vr(dst, 2), sr(srd, 4), so, (r % 2) * 2048, NT))
    a("buffer_load_dwordx4 %s, v4, s[20:23], 0 offen" % vr(SH, 4))
    a("buffer_load_dwordx4 %s, v4, s[20:23], 0 offen offset:16" % vr(SH + 4, 4))
    a("buffer_load_dwordx2 %s, v2, s[12:15], 0 offen%s" % (vr(KR, 2), NT))
    a("buffer_load_dwordx2 %s, v2, s[12:15], 0 offen offset:2048%s" % (vr(KR + 2, 2), NT))
    a("buffer_load_dwordx2 %s, v3, s[12:15], 0 offen%s" % (vr(KR + 4, 2), NT))
    for r in range(8): rowload(KR + 6 + 2 * r, 12, r)
    for r in range(8): rowload(VR + 2 * r, 16, r)
    for r in range(8): rowload(XR + 2 * r, 8, r)
    NP = 0
    a("s_mov_b32 s33, 0xffff0000\ns_mov_b32 s34, 0x05040100\ns_mov_b32 s35, 0x07060302\ns_mov_b32 s40, 0x%x" % ONES)
    a("v_lshlrev_b32 v5, 4, v0\nv_add_u32 v5, s3, v5")
    if "nok1pf" not in OPT:
        a.srd(48, 44, MB4)
        for c in range(4):
            a("buffer_load_dwordx4 %s, v5, s[48:51], %s offen" % (vr(164 + 4 * c, 4), ["0", "s30", "s31", "s32"][c]))
        NP = 4
    a("s_lshl_b32 s41, s2, 3\nv_add_u32 v5, s41, v0\nv_and_b32 v5, 255, v5\nv_lshlrev_b32 v5, 4, v5\nv_add_u32 v5, s3, v5")
    WF, KF, KS = 72, 88, 132
    a("s_waitcnt vmcnt(%d)" % (27 + NP))
    for c in range(4):
        for j in range(4):
            src = SH + 2 * c + j // 2
            if j % 2 == 0: a("v_lshlrev_b32 v%d, 16, v%d" % (WF + 4 * j + c, src))
            else: a("v_and_b32 v%d, s33, v%d" % (WF + 4 * j + c, src))
    def unpack(dst, src):
        a("v_lshlrev_b32 v%d, 16, v%d\nv_and_b32 v%d, s33, v%d" % (dst, src, dst + 1, src))
        a("v_lshlrev_b32 v%d, 16, v%d\nv_and_b32 v%d, s33, v%d" % (dst + 2, src + 1, dst + 3, src + 1))
    a("s_waitcnt vmcnt(%d)" % (16 + NP))
    for r in range(11): unpack(KF + 4 * r, KR + 2 * r)
    for r in range(8):
        for j in (3, 2, 1, 0):
            for p in range(2):
                d = KS + 4 * r + 2 * p; w = WF + 4 * j + 2 * p; k = KF + 4 * (r + 3 - j) + 2 * p
                if j == 3: a("v_pk_mul_f32 %s, %s, %s" % (vr(d, 2), vr(w, 2), vr(k, 2)))
                else: a("v_pk_fma_f32 %s, %s, %s, %s" % (vr(d, 2), vr(w, 2), vr(k, 2), vr(d, 2)))
    a("s_waitcnt vmcnt(%d)" % (8 + NP))
    VF = KF
    for r in range(8): unpack(VF + 4 * r, VR + 2 * r)
    for r in range(8):
        for p in range(2):
            d = KS + 4 * r + 2 * p
            a("v_pk_mul_f32 %s, %s, %s" % (vr(d, 2), vr(d, 2), vr(VF + 4 * r + 2 * p, 2)))
    G = 10
    G = 12
    for c in range(4):
        for d in range(4):
            a("v_cvt_pk_bf16_f32 v%d, v%d, v%d" % (G + 4 * c + d, KS + 4 * (7 - 2 * d) + c, KS + 4 * (6 - 2 * d) + c))
    for c in range(4):
        so = ["0", "s30", "s31", "s32"][c]
        a("buffer_store_dwordx4 %s, v5, s[36:39], %s offen" % (vr(G + 4 * c, 4), so))
    a("v_add_u32 v6, 0x%x, v5" % XB)
    a("s_waitcnt vmcnt(%d)" % (4 + NP))
    G2 = 72
    for c in range(4):
        for d in range(4):
            a("v_perm_b32 v%d, v%d, v%d, s%d" % (G2 + 4 * c + d, XR + 2 * (2 * d + 1) + c // 2, XR + 2 * (2 * d) + c // 2, 34 + (c & 1)))
    for c in range(4):
        so = ["0", "s30", "s31", "s32"][c]
        a("buffer_store_dwordx4 %s, v6, s[36:39], %s offen" % (vr(G2 + 4 * c, 4), so))
    R = 88
    for r in range(8):
        a("v_dot2_f32_bf16 v%d, v%d, s40, 0" % (R + r, XR + 2 * r))
        a("v_dot2_f32_bf16 v%d, v%d, v%d, 0" % (R + 8 + r, XR + 2 * r, XR + 2 * r))
    for r in range(8):
        a("v_dot2_f32_bf16 v%d, v%d, s40, v%d" % (R + r, XR + 2 * r + 1, R + r))
        a("v_dot2_f32_bf16 v%d, v%d, v%d, v%d" % (R + 8 + r, XR + 2 * r + 1, XR + 2 * r + 1, R + 8 + r))
    a("s_nop 2")
    for i in range(8): a("v_permlane32_swap_b32 v%d, v%d" % (R + i, R + 8 + i))
    for i in range(8): a("v_add_f32 v%d, v%d, v%d" % (R + i, R + i, R + 8 + i))
    a("s_nop 1")
    for i in range(4): a("v_permlane16_swap_b32 v%d, v%d" % (R + i, R + 4 + i))
    for i in range(4): a("v_add_f32 v%d, v%d, v%d" % (R + i, R + i, R + 4 + i))
    for sh in (8, 4, 2, 1):
        for i in range(4):
            a("v_add_f32_dpp v%d, v%d, v%d row_ror:%d row_mask:0xf bank_mask:0xf" % (R + i, R + i, R + i, sh))
    a("v_and_b32 v7, 15, v0\nv_cmp_eq_u32 vcc, 0, v7\nv_and_b32 v8, 0xf0, v0")
    a("s_and_saveexec_b64 s[42:43], vcc")
    a("ds_write_b128 v8, %s" % vr(R, 4))
    a("s_mov_b64 exec, s[42:43]")
    a("s_waitcnt lgkmcnt(0)\ns_barrier")
    a("v_cmp_gt_u32 vcc, 8, v0\ns_and_saveexec_b64 s[42:43], vcc\ns_cbranch_execz K1_END")
    a("v_lshlrev_b32 v8, 2, v0")
    for w in range(4):
        a("ds_read_b32 v%d, v8 offset:%d\nds_read_b32 v%d, v8 offset:%d" % (R + w, 64 * w, R + 4 + w, 64 * w + 32))
    a("s_lshl_b32 s3, s2, 5\ns_add_u32 s3, s3, 0x%x\nv_add_u32 v8, s3, v8" % ST1)
    a("s_waitcnt lgkmcnt(0)")
    a("v_add_f32 v%d, v%d, v%d\nv_add_f32 v%d, v%d, v%d\nv_add_f32 v%d, v%d, v%d" % (R, R, R + 1, R + 2, R + 2, R + 3, R, R, R + 2))
    a("v_add_f32 v%d, v%d, v%d\nv_add_f32 v%d, v%d, v%d\nv_add_f32 v%d, v%d, v%d" % (R + 4, R + 4, R + 5, R + 6, R + 6, R + 7, R + 4, R + 4, R + 6))
    stats_finish(a, R, R + 4, R + 5, R + 6, 1024)
    a("buffer_store_dword v%d, v8, s[36:39], 0 offen" % R)
    a("s_cmp_lt_u32 s2, 16\ns_cbranch_scc0 K1_END\ns_mov_b64 exec, 1")
    a("s_lshl_b32 s3, s2, 8\ns_add_u32 s3, s3, 0x%x\nv_mov_b32 v8, s3\nv_mov_b32 v9, 0" % CNT)
    a("buffer_store_dword v9, v8, s[36:39], 0 offen")
    a("K1_END:\ns_endpgm")

K2_KC = 0; K2_CS = 4160; K2_CH = 4 * K2_CS
K2_U = 4 * K2_CH
K2_X = K2_U + 288 * 64
K2_ST = K2_X + 16384
K2_RED = K2_ST + 8192
K2_CSUM = K2_RED + 32768
K2_FL = K2_CSUM + 8192
K2_LDS = K2_FL + 64
CSP = 0x900000

def gen_k2(a, prefetch=True):
    a.begin("k2_kernel", 256, 768, K2_LDS, vgpr=160, sgpr=96)
    a("s_cmp_ge_u32 s2, 256\ns_cbranch_scc1 K2_END")
    for i in range(8): stamp(a, i)
    a("s_load_dwordx4 s[4:7], s[0:1], 32\ns_load_dwordx4 s[8:11], s[0:1], 56\ns_load_dwordx2 s[12:13], s[0:1], 88")
    a("s_and_b32 s14, s2, 7\ns_lshl_b32 s14, s14, 5\ns_lshr_b32 s15, s2, 3\ns_add_u32 s14, s14, s15")
    a("s_lshr_b32 s15, s14, 6\ns_and_b32 s14, s14, 63")
    a("v_lshrrev_b32 v2, 6, v0\nv_and_b32 v1, 63, v0\ns_nop 0\nv_readfirstlane_b32 s16, v2")
    a("s_nop 1")
    a("s_cmp_lt_u32 s16, 8\ns_cbranch_scc1 K2_COMP")
    a("s_sub_u32 s17, s16, 8")
    a("v_lshrrev_b32 v2, 4, v1\nv_and_b32 v3, 3, v1\nv_xor_b32 v2, v2, v3\ns_lshl_b32 s21, s14, 2\nv_add_u32 v2, s21, v2")
    a("v_lshrrev_b32 v3, 2, v1\ns_lshl_b32 s20, s17, 6\nv_add_u32 v3, s20, v3\ns_lshl_b32 s20, s15, 12")
    a("v_lshl_add_u32 v4, v3, 3, v2\nv_and_b32 v4, 255, v4\nv_lshlrev_b32 v4, 4, v4\nv_lshlrev_b32 v5, 14, v3\nv_add3_u32 v4, v4, v5, s20")
    a("v_xor_b32 v15, 2048, v4")
    a("v_sub_u32 v3, 207, v3")
    a("v_lshl_add_u32 v5, v3, 3, v2\nv_and_b32 v5, 255, v5\nv_lshlrev_b32 v5, 4, v5\nv_lshlrev_b32 v3, 14, v3\nv_add3_u32 v5, v5, v3, s20")
    a("v_xor_b32 v3, 2048, v5")
    a("s_waitcnt lgkmcnt(0)")
    a.srd(28, 12, WS_BYTES)
    for qq in range(4):
        a("s_mov_b32 s21, 0x%x" % ((3 - qq) * 0x40000))
        a("s_lshl_b32 s20, s17, 12\ns_add_u32 m0, s20, %d\ns_nop 0" % (K2_U + 1024 * qq))
        a("buffer_load_dwordx4 v%d, s[28:31], s21 offen lds" % (5 if qq & 1 else 3))
    a("v_mov_b32 v8, 0\nv_mov_b32 v9, 0\nv_mov_b32 v10, 0\nv_mov_b32 v11, 0\nv_lshlrev_b32 v6, 4, v1")
    a("s_lshl_b32 s20, s17, 10\ns_add_u32 s20, s20, %d\nv_add_u32 v7, s20, v6" % (K2_U + 16384))
    a("s_cmp_lt_u32 s17, 2\ns_cbranch_scc0 K2_NOPAD")
    a("ds_write_b128 v7, v[8:11]")
    a("K2_NOPAD:")
    a("v_mov_b32 v7, %d\nds_write_b128 v7, v[8:11]\nds_write_b128 v7, v[8:11] offset:16\nds_write_b128 v7, v[8:11] offset:32" % K2_FL)
    a.srd(36, 8, 7340032)
    a("s_lshr_b32 s20, s2, 4\ns_lshl_b32 s20, s20, 6\ns_lshl_b32 s21, s17, 4\ns_add_u32 s20, s20, s21\ns_mul_i32 s20, s20, 7168")
    a("s_and_b32 s21, s2, 15\ns_mul_i32 s21, s21, 448\ns_add_u32 s20, s20, s21")
    a("v_lshrrev_b32 v12, 5, v1\nv_mul_u32_u24 v12, 7168, v12\nv_and_b32 v13, 31, v1\nv_lshlrev_b32 v14, 4, v13\nv_add3_u32 v12, v12, v14, s20")
    WD = 16
    NT = "" if "nont" in OPT else " nt"
    SF = " nt" if "stnt" in OPT else (" sc1" if "stsc1" in OPT else (" sc0 sc1" if "stsc01" in OPT else ""))
    a.srd(40, 10, 7340032)
    a("s_and_b32 s20, s2, 31\ns_mul_i32 s20, s20, 28\ns_mul_i32 s21, s17, 7\ns_add_u32 s26, s20, s21")
    a("s_lshr_b32 s27, s2, 5\ns_lshl_b32 s32, s26, 13\ns_lshl_b32 s21, s27, 8\ns_add_u32 s32, s32, s21")
    a("v_lshrrev_b32 v92, 4, v1\nv_and_b32 v93, 15, v1\nv_lshlrev_b32 v94, 1, v92\nv_xor_b32 v93, v93, v94")
    a("s_and_b32 s21, s26, 1\ns_lshl_b32 s21, s21, 3\nv_xor_b32 v93, s21, v93\nv_lshlrev_b32 v93, 4, v93\nv_lshl_add_u32 v92, v92, 11, v93\nv_xor_b32 v93, 128, v92")
    for i in range(7):
        a("buffer_load_dwordx4 %s, v%d, s[40:43], s32 offen%s\ns_add_u32 s32, s32, 8192" % (vr(64 + 4 * i, 4), 92 + (i & 1), NT))
    stamp(a, 1)
    a("s_waitcnt vmcnt(7) lgkmcnt(0)\ns_barrier")
    stamp(a, 2)
    for qq in range(4):
        a("s_mov_b32 s21, 0x%x" % (XB + qq * 0x40000))
        a("s_lshl_b32 s20, s17, 12\ns_add_u32 m0, s20, %d\ns_nop 0" % (K2_X + 1024 * qq))
        a("buffer_load_dwordx4 v%d, s[28:31], s21 offen lds" % (15 if qq & 1 else 4))
    for qq in range(2):
        a("s_lshl_b32 s20, s17, 11\ns_add_u32 m0, s20, %d\ns_add_u32 s21, s20, 0x%x" % (K2_ST + 1024 * qq, ST1 + 1024 * qq))
        a("buffer_load_dwordx4 v6, s[28:31], s21 offen lds")
    a("s_mul_i32 s35, s27, %d\ns_lshl_b32 s21, s26, 10\ns_add_u32 s35, s35, s21\ns_add_u32 s35, s35, 0x%x" % (3584 * 256, W2P))
    a("v_cmp_gt_u32 vcc, 28, v13\ns_and_saveexec_b64 s[22:23], vcc")
    for i in range(8):
        a("s_mov_b32 s21, %d" % (2 * i * 7168))
        a("buffer_load_dwordx4 %s, v12, s[36:39], s21 offen%s" % (vr(WD + 4 * i, 4), NT if "w1p" in OPT else ""))
    a("s_mov_b64 exec, s[22:23]")
    a("s_lshl_b32 s20, s17, 2\ns_add_u32 s20, s20, %d\nv_mov_b32 v7, s20\nv_mov_b32 v14, 1" % (K2_FL + 32))
    stamp(a, 3)
    a("s_waitcnt vmcnt(8)\nds_write_b32 v7, v14")
    stamp(a, 4)
    for i in range(7):
        a("buffer_store_dwordx4 %s, v6, s[28:31], s35 offen%s\ns_add_u32 s35, s35, 1024" % (vr(64 + 4 * i, 4), SF))
    a("s_mov_b32 s24, 0x00003f80\ns_mov_b32 s25, 0x3f800000")
    CA = 48
    if "w1p" in OPT:
        a("s_and_b32 s20, s2, 15\ns_lshl_b32 s20, s20, 10\ns_lshr_b32 s21, s2, 4\ns_lshl_b32 s21, s21, 6\ns_add_u32 s20, s20, s21\ns_lshl_b32 s21, s17, 4\ns_add_u32 s20, s20, s21")
        a("s_mul_i32 s34, s20, 448\ns_add_u32 s34, s34, 0x%x" % W1P)
        a("v_lshrrev_b32 v10, 5, v1\nv_mul_u32_u24 v10, 448, v10\nv_lshl_add_u32 v10, v13, 4, v10\nv_lshlrev_b32 v11, 4, v13\nv_xor_b32 v11, 32, v11")
        a("v_lshrrev_b32 v7, 5, v1\nv_mul_u32_u24 v7, 448, v7\nv_add_u32 v11, v11, v7")
        a("s_waitcnt vmcnt(0)")
        a("v_cmp_gt_u32 vcc, 28, v13\ns_and_saveexec_b64 s[22:23], vcc")
        for i in range(8):
            a("buffer_store_dwordx4 %s, v%d, s[28:31], s34 offen%s\ns_add_u32 s34, s34, 896" % (vr(WD + 4 * i, 4), 11 if i & 2 else 10, SF))
        a("s_mov_b64 exec, s[22:23]")
    else:
        a("s_waitcnt vmcnt(7)")
    for i in range(8):
        for d in range(4):
            for hh in range(2):
                c = CA + 2 * d + hh
                a("v_dot2_f32_bf16 v%d, v%d, s%d, %s" % (c, WD + 4 * i + d, 24 + hh, "0" if i == 0 else "v%d" % c))
    a("v_lshlrev_b32 v14, 5, v1\ns_lshl_b32 s20, s17, 11\ns_add_u32 s20, s20, %d\nv_add_u32 v14, s20, v14\ns_nop 0" % K2_CSUM)
    a("ds_write_b128 v14, %s\nds_write_b128 v14, %s offset:16" % (vr(CA, 4), vr(CA + 4, 4)))
    a("s_mul_i32 s20, s17, 224\nv_lshlrev_b32 v14, 2, v1\nv_add_u32 v14, s20, v14")
    a("s_lshr_b32 s20, s2, 4\ns_mul_i32 s20, s20, 14336\ns_and_b32 s21, s2, 15\ns_mul_i32 s21, s21, 896\ns_add_u32 s20, s20, s21\ns_add_u32 s20, s20, 0x%x" % CSP)
    stamp(a, 5)
    a("s_waitcnt lgkmcnt(0)\ns_barrier")
    stamp(a, 6)
    a("v_add_u32 v15, %d, v14" % K2_CSUM)
    for p in range(8): a("ds_read_b32 v%d, v15 offset:%d" % (16 + p, 1024 * p))
    a("s_mov_b32 exec_hi, 0x00ffffff\ns_waitcnt lgkmcnt(0)")
    for st in (4, 2, 1):
        for p in range(st): a("v_add_f32 v%d, v%d, v%d" % (16 + p, 16 + p, 16 + st + p))
    a("buffer_store_dword v16, v14, s[28:31], s20 offen")
    a("s_mov_b64 exec, -1")
    stamp(a, 7)
    stamp_store(a, 1, 16, 12, 12)
    a("s_endpgm")
    a("K2_COMP:")
    a("s_and_b32 s17, s16, 3\ns_lshr_b32 s18, s16, 2")
    a("s_lshl_b32 s19, s14, 4\ns_lshl_b32 s20, s17, 2\ns_add_u32 s19, s19, s20\ns_add_u32 s19, s19, s15")
    a("s_lshl_b32 s20, s18, 11\nv_lshlrev_b32 v3, 4, v1\nv_add_u32 v3, s20, v3")
    a("v_add_u32 v4, -8, v3")
    a("v_lshlrev_b32 v5, 4, v1\nv_add_u32 v5, 0xffffffe0, v5")
    a("v_cmp_eq_u32 vcc, 2, v1\nv_mov_b32 v6, 4096\ns_nop 0\nv_cndmask_b32 v5, v5, v6, vcc")
    a("v_add_u32 v6, -8, v5")
    a("s_waitcnt lgkmcnt(0)")
    a("s_lshl_b32 s20, s19, 12\ns_add_u32 s4, s4, s20\ns_addc_u32 s5, s5, 0")
    a.srd(24, 4, 4096)
    NTK = " nt" if ("nok1pf" in OPT and "nont" not in OPT) else ""
    DK = [48, 56, 64]
    a("buffer_load_dwordx4 %s, v3, s[24:27], 0 offen%s" % (vr(DK[0] + 4, 4), NTK))
    a("buffer_load_dwordx2 %s, v4, s[24:27], 0 offen%s" % (vr(DK[0] + 2, 2), NTK))
    a("buffer_load_dwordx4 %s, v3, s[24:27], 0 offen offset:1024%s" % (vr(DK[1] + 4, 4), NTK))
    a("buffer_load_dwordx2 %s, v3, s[24:27], 0 offen offset:1016%s" % (vr(DK[1] + 2, 2), NTK))
    a("s_mov_b64 exec, 7")
    a("buffer_load_dwordx4 %s, v5, s[24:27], 0 offen" % vr(DK[2] + 4, 4))
    a("buffer_load_dwordx2 %s, v6, s[24:27], 0 offen" % vr(DK[2] + 2, 2))
    a("s_mov_b64 exec, -1")
    a.srd(28, 12, WS_BYTES)
    a("s_lshl_b32 s20, s19, 1\ns_and_b32 s20, s20, 0xfffffffc\ns_add_u32 s6, s6, s20\ns_addc_u32 s7, s7, 0")
    a("s_load_dword s21, s[6:7], 0")
    a("s_mul_i32 s20, s17, %d\ns_add_u32 s20, s20, 32\nv_add_u32 v14, s20, v3\nv_add_u32 v15, s20, v5" % K2_CH)
    a("v_and_b32 v2, 15, v1\nv_lshrrev_b32 v3, 4, v1")
    a("v_and_b32 v4, 1, v3\nv_lshrrev_b32 v5, 1, v3")
    a("v_sub_u32 v6, 3, v2\nv_and_b32 v6, 3, v6\nv_mul_u32_u24 v6, %d, v6" % K2_CS)
    a("v_lshrrev_b32 v7, 2, v2\nv_lshlrev_b32 v7, 3, v7\nv_add_u32 v6, v6, v7")
    a("v_lshlrev_b32 v7, 5, v5\nv_add_u32 v6, v6, v7\nv_lshlrev_b32 v7, 4, v4\nv_sub_u32 v6, v6, v7")
    a("s_mul_i32 s20, s17, %d\ns_lshl_b32 s32, s18, 8\ns_add_u32 s20, s20, s32\ns_add_u32 s20, s20, 24\nv_add_u32 v6, s20, v6" % K2_CH)
    BA = 8
    a("v_lshlrev_b32 v7, 1, v5\nv_sub_u32 v7, v7, v4\nv_lshlrev_b32 v12, 1, v2\nv_sub_u32 v7, v7, v12")
    a("s_lshl_b32 s20, s18, 4\ns_add_u32 s20, s20, 31\nv_add_u32 v7, s20, v7\ns_mov_b32 s32, %d" % K2_U)
    for ee in range(4):
        a("v_add_u32 v12, %d, v7\nv_lshrrev_b32 v13, 2, v12\nv_and_b32 v13, 3, v13\nv_xor_b32 v13, s17, v13" % (4 * ee))
        a("v_lshlrev_b32 v13, 4, v13\nv_lshlrev_b32 v12, 6, v12\nv_add3_u32 v%d, v12, v13, s32" % (BA + ee))
    stamp(a, 1)
    T = 72
    for p in range(3):
        D = DK[p] + 4
        a("s_waitcnt vmcnt(%d)" % (4 - 2 * p))
        if p == 2: a("s_mov_b64 exec, 7")
        t = T + 12 * p
        for i in range(4): a("v_alignbit_b32 v%d, v%d, v%d, 16" % (t + i, D + i, D + i - 1))
        for i in range(4): a("v_mov_b32 v%d, v%d" % (t + 4 + i, D + i - 1))
        for i in range(4): a("v_alignbit_b32 v%d, v%d, v%d, 16" % (t + 8 + i, D + i - 1, D + i - 2))
        ad = "v14" if p < 2 else "v15"
        off = 1024 * p if p < 2 else 0
        a("ds_write_b128 %s, %s offset:%d" % (ad, vr(D, 4), off))
        for sg in range(1, 4):
            a("ds_write_b128 %s, %s offset:%d" % (ad, vr(t + 4 * (sg - 1), 4), off + sg * K2_CS))
    a("s_mov_b64 exec, -1")
    stamp(a, 2)
    a("s_waitcnt lgkmcnt(0)\ns_barrier")
    stamp(a, 3)
    if STAMP: a("s_waitcnt lgkmcnt(0)")
    ACC = 16; FR = 48
    def fr(gi): return FR + 8 * (gi % 12)
    def rd(gi):
        ee, n = divmod(gi, 8); f = fr(gi)
        a("ds_read_b64 %s, v6 offset:%d" % (vr(f, 2), 512 * n + 64 * ee))
        a("ds_read_b64 %s, v6 offset:%d" % (vr(f + 2, 2), 512 * n + 64 * ee + 8))
        a("ds_read_b128 %s, v%d offset:%d" % (vr(f + 4, 4), BA + ee, 2048 * (7 - n)))
    order = []
    for n in range(8):
        grp = []
        for o in range(n):
            if n + o <= 7: grp += [(n, o), (o, n)]
        if 2 * n <= 7: grp.append((n, n))
        order.append(grp)
    for gi in range(4): rd(gi)
    touched = set()
    for gi in range(32):
        ee, n = divmod(gi, 8)
        a("s_waitcnt lgkmcnt(%d)" % (3 * min(3, 31 - gi)))
        first = True
        for (i, m) in order[n]:
            t = i + m
            c = vr(ACC + 4 * t, 4) if t in touched else "0"
            touched.add(t)
            a("v_mfma_f32_16x16x32_bf16 %s, %s, %s, %s" % (vr(ACC + 4 * t, 4), vr(fr(8 * ee + i), 4), vr(fr(8 * ee + m) + 4, 4), c))
            if first and gi + 4 < 32: rd(gi + 4)
            first = False
    stamp(a, 4)
    a("s_lshl_b32 s20, s16, 12\ns_add_u32 s20, s20, %d\nv_lshlrev_b32 v12, 4, v1\nv_add_u32 v13, s20, v12" % K2_RED)
    a("s_xor_b32 s20, s16, 4\ns_lshl_b32 s20, s20, 12\ns_add_u32 s20, s20, %d\nv_add_u32 v14, s20, v12" % K2_RED)
    a("s_nop 3")
    a("s_cmp_eq_u32 s18, 0\ns_cbranch_scc0 K2_SEND_LO")
    for tt in range(4): a("ds_write_b128 v13, %s offset:%d" % (vr(ACC + 16 + 4 * tt, 4), 1024 * tt))
    a("s_branch K2_SENT")
    a("K2_SEND_LO:")
    for tt in range(4): a("ds_write_b128 v13, %s offset:%d" % (vr(ACC + 4 * tt, 4), 1024 * tt))
    a("s_nop 1")
    for i in range(16): a("v_mov_b32 v%d, v%d" % (ACC + i, ACC + 16 + i))
    a("K2_SENT:")
    a("s_lshl_b32 s20, s16, 2\ns_add_u32 s20, s20, %d\nv_mov_b32 v12, s20\nv_mov_b32 v13, 1\ns_waitcnt lgkmcnt(0)\nds_write_b32 v12, v13" % K2_FL)
    a("v_xor_b32 v15, 16, v12\nv_mov_b32 v13, %d" % (K2_FL + 32))
    a("v_lshlrev_b32 v12, 1, v2\nv_add_u32 v12, v12, v5")
    a("s_lshl_b32 s20, s18, 7\ns_sub_u32 s20, 159, s20\nv_sub_u32 v7, s20, v12")
    a("v_lshrrev_b32 v8, 2, v7\nv_and_b32 v8, 3, v8\nv_xor_b32 v8, s17, v8\nv_lshlrev_b32 v8, 4, v8")
    a("v_lshlrev_b32 v7, 6, v7\nv_xor_b32 v9, 1, v4\nv_lshlrev_b32 v9, 3, v9\nv_add3_u32 v7, v7, v8, v9\nv_add_u32 v7, %d, v7" % K2_U)
    U_, O, X_, S_ = 64, 48, 72, 80
    for tt in range(4): a("ds_read_b64 %s, v7 offset:%d" % (vr(U_ + 2 * tt, 2), 2048 * (3 - tt)))
    a("s_lshl_b32 s20, s18, 7\nv_add_u32 v8, s20, v12")
    a("v_lshrrev_b32 v9, 2, v8\nv_and_b32 v9, 3, v9\nv_xor_b32 v9, s17, v9\nv_lshlrev_b32 v9, 4, v9")
    a("v_lshlrev_b32 v8, 6, v8\nv_lshlrev_b32 v10, 3, v4\nv_add3_u32 v8, v8, v9, v10\nv_add_u32 v8, %d, v8" % K2_X)
    a("v_lshlrev_b32 v9, 4, v2\nv_lshlrev_b32 v10, 2, v3\ns_lshl_b32 s20, s18, 10\nv_add3_u32 v9, v9, v10, s20")
    a("v_lshlrev_b32 v10, 2, v9\nv_add_u32 v10, %d, v10" % K2_ST)
    a("s_and_b32 s20, s19, 7\nv_and_b32 v9, 7, v2\nv_xor_b32 v9, s20, v9\nv_lshlrev_b32 v9, 5, v9\nv_lshl_add_u32 v9, v3, 3, v9")
    a("v_lshrrev_b32 v11, 3, v2\nv_lshl_add_u32 v9, v11, 18, v9")
    a("s_lshl_b32 s20, s19, 8\ns_lshl_b32 s34, s18, 21\ns_add_u32 s34, s34, s20\ns_add_u32 s34, s34, 0x%x" % HT)
    a("s_lshl_b32 s20, s21, 16\ns_and_b32 s21, s21, 0xffff0000\ns_bitcmp0_b32 s15, 0\ns_cselect_b32 s21, s20, s21")
    a("s_mov_b32 s33, 0xffff0000")
    a("s_waitcnt lgkmcnt(0)")
    W = 96
    for tt in range(4):
        uf = W + 16 * tt; y = ACC + 4 * tt
        a("v_and_b32 v%d, s33, v%d\nv_lshlrev_b32 v%d, 16, v%d" % (uf + 0, U_ + 2 * tt + 1, uf + 1, U_ + 2 * tt + 1))
        a("v_and_b32 v%d, s33, v%d\nv_lshlrev_b32 v%d, 16, v%d" % (uf + 2, U_ + 2 * tt, uf + 3, U_ + 2 * tt))
        for r in range(4): a("v_fma_f32 v%d, v%d, s21, v%d" % (y + r, uf + r, y + r))
    a("K2_POLL:")
    a("ds_read_b32 v72, v15\nds_read_b128 v[76:79], v13\ns_waitcnt lgkmcnt(0)")
    a("v_and_b32 v72, v72, v76\nv_and_b32 v77, v77, v78\nv_and_b32 v72, v72, v79\nv_and_b32 v72, v72, v77\ns_nop 0\nv_readfirstlane_b32 s20, v72")
    a("s_nop 0\ns_cmp_eq_u32 s20, 1\ns_cbranch_scc1 K2_GO\ns_sleep 1\ns_branch K2_POLL")
    a("K2_GO:")
    stamp(a, 5)
    if STAMP: a("s_waitcnt lgkmcnt(0)")
    for tt in range(4):
        a("ds_read_b128 %s, v10 offset:%d" % (vr(S_ + 4 * tt, 4), 1024 * tt))
        a("ds_read_b64 %s, v8 offset:%d" % (vr(X_ + 2 * tt, 2), 2048 * tt))
        a("ds_read_b128 %s, v14 offset:%d" % (vr(O + 4 * tt, 4), 1024 * tt))
    for tt in range(4):
        a("s_waitcnt lgkmcnt(%d)" % (3 * (3 - tt)))
        y = ACC + 4 * tt; w = W + 16 * tt
        xf, mf, rf = w + 4, w + 8, w + 12
        for r in range(4): a("v_and_b32 v%d, s33, v%d" % (rf + r, S_ + 4 * tt + r))
        for r in range(4): a("v_rcp_f32 v%d, v%d" % (rf + r, rf + r))
        for r in range(4): a("v_add_f32 v%d, v%d, v%d" % (y + r, y + r, O + 4 * tt + r))
        a("v_lshlrev_b32 v%d, 16, v%d\nv_and_b32 v%d, s33, v%d" % (xf + 0, X_ + 2 * tt, xf + 1, X_ + 2 * tt))
        a("v_lshlrev_b32 v%d, 16, v%d\nv_and_b32 v%d, s33, v%d" % (xf + 2, X_ + 2 * tt + 1, xf + 3, X_ + 2 * tt + 1))
        for r in range(4): a("v_lshlrev_b32 v%d, 16, v%d" % (mf + r, S_ + 4 * tt + r))
        for r in range(4): a("v_sub_f32 v%d, v%d, v%d" % (mf + r, xf + r, mf + r))
        for r in range(4): a("v_mul_f32 v%d, v%d, v%d" % (mf + r, mf + r, rf + r))
        for r in range(4): a("v_fma_f32 v%d, v%d, v%d, v%d" % (y + r, mf + r, y + r, xf + r))
        a("v_cvt_pk_bf16_f32 v%d, v%d, v%d\nv_cvt_pk_bf16_f32 v%d, v%d, v%d" % (w, y, y + 1, w + 1, y + 2, y + 3))
        a("buffer_store_dwordx2 %s, v9, s[28:31], s34 offen\ns_add_u32 s34, s34, 0x80000" % vr(w, 2))
    stamp(a, 6)
    if STAMP: a("s_waitcnt vmcnt(0)")
    stamp(a, 7)
    stamp_store(a, 1, 16, 12, 12)
    a("K2_END:\ns_endpgm")

if __name__ == "__main__":
    STAMP = "s_memrealtime" if "--stamp" in sys.argv else ("s_memtime" if "--stampc" in sys.argv else False)
    a = Asm()
    gen_k1(a)
    gen_k2(a, prefetch="--nopf" not in sys.argv)
    sys.stdout.write(a.text())
```

```python
from gen import *
import gen

LOG2E = 1.4426950408889634

K3_SUB = 22528; K3_STG = 2 * K3_SUB; K3_R = 3
K3_TAB = K3_STG * K3_R
K3_CS = K3_TAB + 1024
K3_LDS = K3_CS + 896
K3_NST = 16

def lane_parts(a):
    a("v_and_b32 v1, 63, v0\nv_lshrrev_b32 v2, 4, v1\nv_bfe_u32 v3, v1, 2, 2\nv_and_b32 v4, 3, v1\nv_and_b32 v5, 1, v2")

def gen_k3(a):
    a.begin("k3_kernel", 256, 512, K3_LDS, vgpr=216, sgpr=96)
    a("s_cmp_ge_u32 s2, 256\ns_cbranch_scc1 K3_END")
    for i in range(8): stamp(a, i)
    a("s_load_dwordx4 s[4:7], s[0:1], 56\ns_load_dwordx2 s[12:13], s[0:1], 88")
    a("s_and_b32 s8, s2, 7\ns_lshr_b32 s9, s2, 3")
    if "mapB" in OPT:
        a("s_lshr_b32 s14, s8, 1\ns_lshl_b32 s14, s14, 2\ns_lshr_b32 s15, s9, 3\ns_add_u32 s14, s14, s15")
        a("s_and_b32 s15, s8, 1\ns_lshl_b32 s15, s15, 3\ns_and_b32 s9, s9, 7\ns_add_u32 s15, s15, s9")
    else:
        a("s_and_b32 s14, s8, 1\ns_lshl_b32 s14, s14, 3\ns_lshr_b32 s15, s9, 2\ns_add_u32 s14, s14, s15")
        a("s_lshr_b32 s15, s8, 1\ns_lshl_b32 s15, s15, 2\ns_and_b32 s9, s9, 3\ns_add_u32 s15, s15, s9")
    a("v_lshrrev_b32 v6, 6, v0")
    lane_parts(a)
    a("v_readfirstlane_b32 s16, v6")
    a("s_mov_b32 s30, %d\ns_mov_b32 s31, %d" % (K3_STG, -(K3_R - 1) * K3_STG & 0xffffffff))
    a("s_cmp_lt_u32 s16, 4\ns_cbranch_scc1 K3_CONS")
    if "e3" in OPT: a("s_endpgm")
    a("s_sub_u32 s17, s16, 4\ns_and_b32 s18, s17, 1")
    a("v_lshlrev_b32 v8, 4, v1")
    a("s_and_b32 s52, s15, 12\ns_and_b32 s53, s15, 3")
    a("s_mul_i32 s27, s18, %d" % K3_SUB)
    a("s_waitcnt lgkmcnt(0)")
    a.srd(44, 12, WS_BYTES)
    def mkstage(n, step):
        cnt = [0]
        def stage():
            a("s_mul_i32 s24, s52, %d\ns_add_u32 s24, s24, s26\ns_mov_b32 m0, s28" % (0 if "e2" in OPT else step))
            cnt[0] += 1
            for i in range(n if not ("e1" in OPT and cnt[0] > 2) else 0):
                if i and i % 4 == 0: a("s_add_u32 m0, m0, 4096\ns_add_u32 s24, s24, 4096")
                if i == 0: a("s_add_u32 s52, s52, 1")
                a("buffer_load_dwordx4 v8, s[44:47], s24 offen offset:%d lds" % (1024 * (i % 4)))
            a("s_and_b32 s52, s52, 15")
            a("s_add_u32 s28, s28, %d\ns_cmp_ge_u32 s28, s29\ns_cselect_b32 s28, s27, s28" % K3_STG)
        return stage
    a("s_cmp_lt_u32 s17, 2\ns_cbranch_scc1 K3_XL")
    a("s_add_u32 s27, s27, 8192\ns_mov_b32 s28, s27\ns_add_u32 s29, s27, %d" % (K3_R * K3_STG))
    if "w1p" in OPT:
        a("s_mul_i32 s26, s15, %d\ns_mul_i32 s21, s18, 14336\ns_add_u32 s26, s26, s21\ns_add_u32 s26, s26, 0x%x" % (1024 * 448, W1P))
        stage = mkstage(14, 28672)
    else:
        a.srd(40, 4, 7340032)
        a("s_mul_i32 s20, s15, 448\ns_mul_i32 s21, s18, %d\ns_add_u32 s20, s20, s21\ns_mov_b32 s22, 0x924924a" % (32 * 7168))
        def wpiece(v, pi):
            a("v_add_u32 v6, %d, v1\nv_mul_hi_u32 v7, v6, s22" % (64 * pi))
            a("v_mul_u32_u24 v9, 28, v7\nv_sub_u32 v6, v6, v9")
            a("v_lshrrev_b32 v9, 1, v7\nv_and_b32 v9, 2, v9\nv_xor_b32 v6, v6, v9\nv_lshlrev_b32 v6, 4, v6")
            a("v_mul_u32_u24 v7, 7168, v7\nv_add3_u32 v%d, v7, v6, s20" % v)
        first = [True]
        def stage():
            a("s_mul_i32 s24, s52, %d\ns_mov_b32 m0, s28\ns_add_u32 s52, s52, 1" % (64 * 7168))
            for i in range(14):
                if first[0]: wpiece(10 + i, i)
                if i: a("s_add_u32 m0, m0, 1024\ns_nop 0")
                a("buffer_load_dwordx4 v%d, s[40:43], s24 offen lds" % (10 + i))
            first[0] = False
            a("s_and_b32 s52, s52, 15")
            a("s_add_u32 s28, s28, %d\ns_cmp_ge_u32 s28, s29\ns_cselect_b32 s28, s27, s28" % K3_STG)
    stage(); stage()
    a("s_mov_b32 s32, 0")
    stamp(a, 1)
    if "blog" in OPT: a("v_mov_b32 v30, 0\nv_mov_b32 v32, 0")
    a("K3_WLOOP:")
    if "blog" in OPT:
        a("s_waitcnt vmcnt(14)\ns_memtime s[60:61]\ns_waitcnt lgkmcnt(0)\ns_sub_u32 s60, s60, s70\nv_mov_b32 v31, s60\nv_cmp_eq_u32 vcc, s32, v1\ns_nop 1\nv_cndmask_b32 v32, v32, v31, vcc")
    a("s_waitcnt vmcnt(14)\ns_barrier")
    if "blog" in OPT:
        a("s_memtime s[60:61]\ns_waitcnt lgkmcnt(0)\ns_sub_u32 s60, s60, s70\nv_mov_b32 v31, s60\nv_cmp_eq_u32 vcc, s32, v1\ns_nop 1\nv_cndmask_b32 v30, v30, v31, vcc")
    stage()
    a("s_add_u32 s32, s32, 1\ns_cmp_lt_u32 s32, %d\ns_cbranch_scc1 K3_WLOOP" % (K3_NST - 2))
    if "blog" in OPT:
        a("s_lshl_b32 s60, s2, 9\ns_add_u32 s60, s60, 0x%x\nv_lshlrev_b32 v31, 2, v1\nv_add_u32 v31, s60, v31" % (STB + 0x800000))
        a("global_store_dword v31, v30, s[12:13]\nglobal_store_dword v31, v32, s[12:13] offset:256\ns_waitcnt vmcnt(0)")
    a("s_waitcnt vmcnt(14)\ns_barrier\ns_branch K3_LTAIL")
    a("K3_XL:")
    a("s_lshl_b32 s26, s14, 18\ns_lshl_b32 s21, s18, 13\ns_add_u32 s26, s26, s21\ns_add_u32 s26, s26, 0x%x" % HT)
    a("s_mov_b32 s28, s27\ns_add_u32 s29, s27, %d" % (K3_R * K3_STG))
    stage = mkstage(8, 16384)
    stage(); stage()
    a("v_lshrrev_b32 v20, 2, v1\nv_and_b32 v21, 7, v20\nv_lshlrev_b32 v21, 1, v21\ns_lshl_b32 s21, s17, 3\nv_add_u32 v22, s21, v4\nv_xor_b32 v21, v21, v22")
    a("v_lshlrev_b32 v21, 4, v21\nv_lshl_add_u32 v20, v20, 8, v21")
    a("s_cmp_eq_u32 s53, 3\ns_cselect_b32 s22, 0, s53\ns_mul_i32 s22, s22, %d\nv_add_u32 v20, s22, v20\nv_xor_b32 v19, 64, v20" % K3_STG)
    a("s_lshl_b32 s21, s14, 2\ns_lshl_b32 s22, s17, 1\ns_add_u32 s21, s21, s22\ns_lshl_b32 s21, s21, 4\ns_add_u32 s21, s21, s15\ns_lshl_b32 s21, s21, 8\ns_add_u32 s21, s21, 0x%x" % XSP)
    a("v_lshlrev_b32 v21, 6, v2\nv_lshlrev_b32 v22, 4, v4\nv_add3_u32 v21, v21, v22, s21\nv_add_u32 v18, 4096, v21")
    a("s_lshl_b32 s21, s14, 8\ns_add_u32 s21, s21, 0x%x\nv_mov_b32 v22, s21\nv_mov_b32 v23, 1\ns_mov_b32 s33, 0xffff0000" % CNT)
    NPIECE = 7
    a("s_add_u32 s54, s53, %d" % (NPIECE + 1))
    a("s_cmp_eq_u32 s17, 0\ns_cselect_b32 s54, s54, 99")
    a("s_mov_b32 s32, 0")
    stamp(a, 1)
    a("K3_LLOOP:")
    a("s_waitcnt vmcnt(8)\ns_barrier")
    a("s_cmp_eq_u32 s32, s54\ns_cbranch_scc0 K3_NOSIG\ns_mov_b64 exec, 1")
    a("buffer_atomic_add v23, v22, s[44:47], 0 offen\ns_mov_b64 exec, -1")
    a("K3_NOSIG:")
    stage()
    pieces = []
    b = Asm()
    for p in range(2):
        for i in range(4):
            b("ds_read_b128 %s, v%d offset:%d" % (vr(24 + 16 * p + 4 * i, 4), 20 - p, (i >> 1) * K3_SUB + (i & 1) * 4096))
    b("s_waitcnt lgkmcnt(0)")
    pieces.append(b)
    for p in range(2):
        R = 64 + 16 * p; U = 56
        for i in range(4):
            if i % 2 == 0:
                b = Asm(); pieces.append(b)
            dst = R if i == 0 else U
            for d in range(4):
                b("v_lshlrev_b32 v%d, 16, v%d\nv_and_b32 v%d, s33, v%d" % (dst + 2 * d, 24 + 16 * p + 4 * i + d, dst + 2 * d + 1, 24 + 16 * p + 4 * i + d))
            for d in range(4):
                if i == 0: b("v_pk_mul_f32 %s, %s, %s" % (vr(R + 8 + 2 * d, 2), vr(R + 2 * d, 2), vr(R + 2 * d, 2)))
                else:
                    b("v_pk_add_f32 %s, %s, %s" % (vr(R + 2 * d, 2), vr(R + 2 * d, 2), vr(U + 2 * d, 2)))
                    b("v_pk_fma_f32 %s, %s, %s, %s" % (vr(R + 8 + 2 * d, 2), vr(U + 2 * d, 2), vr(U + 2 * d, 2), vr(R + 8 + 2 * d, 2)))
    b = Asm(); pieces.append(b)
    for p in range(2):
        R = 64 + 16 * p
        for i in range(8): b("v_permlane32_swap_b32 v%d, v%d" % (R + i, R + 8 + i))
        for i in range(8): b("v_add_f32 v%d, v%d, v%d" % (R + i, R + i, R + 8 + i))
    b = Asm(); pieces.append(b)
    for p in range(2):
        R = 64 + 16 * p
        for i in range(4): b("v_permlane16_swap_b32 v%d, v%d" % (R + i, R + 4 + i))
        for i in range(4): b("v_add_f32 v%d, v%d, v%d" % (R + i, R + i, R + 4 + i))
    for sh in (8, 4):
        for p in range(2):
            R = 64 + 16 * p
            for i in range(4):
                b("v_add_f32_dpp v%d, v%d, v%d row_ror:%d row_mask:0xf bank_mask:0xf" % (R + i, R + i, R + i, sh))
    b("s_mov_b32 exec_lo, 0x000f000f\ns_mov_b32 exec_hi, 0x000f000f")
    b("buffer_store_dwordx4 v[64:67], v21, s[44:47], 0 offen sc1\nbuffer_store_dwordx4 v[80:83], v18, s[44:47], 0 offen sc1")
    b("s_mov_b64 exec, -1")
    assert len(pieces) == NPIECE
    a("s_sub_u32 s55, s32, s53\ns_cmp_lt_u32 s55, %d\ns_cbranch_scc0 K3_NOST" % NPIECE)
    for k, b in enumerate(pieces):
        a("K3_ST%d:" % k)
        if k + 1 < NPIECE: a("s_cmp_eq_u32 s55, %d\ns_cbranch_scc0 K3_ST%d" % (k, k + 1))
        a.lines += b.lines
        if k + 1 < NPIECE: a("s_branch K3_NOST")
    a("K3_NOST:")
    a("s_add_u32 s32, s32, 1\ns_cmp_lt_u32 s32, %d\ns_cbranch_scc1 K3_LLOOP" % (K3_NST - 2))
    a("s_waitcnt vmcnt(8)\ns_barrier")
    a("K3_LTAIL:")
    a("s_lshl_b32 s21, s14, 8\ns_add_u32 s21, s21, 0x%x\nv_mov_b32 v7, s21\ns_mov_b32 s23, 0" % CNT)
    a("K3_POLL:")
    a("buffer_load_dword v21, v7, s[44:47], 0 offen sc1\ns_waitcnt vmcnt(0)")
    a("v_readfirstlane_b32 s21, v21\ns_nop 0\ns_cmp_ge_u32 s21, 16\ns_cbranch_scc1 K3_GOT\ns_sleep 1\ns_add_u32 s23, s23, 1\ns_cmp_lt_u32 s23, 0x400000\ns_cbranch_scc1 K3_POLL")
    a("K3_GOT:")
    a("s_lshl_b32 s21, s14, 2\ns_add_u32 s21, s21, s17\ns_lshl_b32 s21, s21, 12\ns_add_u32 s21, s21, 0x%x\nv_lshlrev_b32 v6, 2, v1" % XSP)
    for p in range(16):
        a("buffer_load_dword v%d, v6, s[44:47], s21 offen offset:%d sc1" % (40 + p, 256 * p))
    a("s_mul_i32 s21, s15, 896\ns_mul_i32 s22, s17, 224\ns_add_u32 s21, s21, s22\ns_add_u32 s21, s21, 0x%x" % CSP)
    for p in range(16):
        a("buffer_load_dword v%d, v6, s[44:47], s21 offen\ns_add_u32 s21, s21, 14336" % (24 + p))
    a("s_barrier")
    NPF = 0
    a("s_lshl_b32 s22, s2, 8\ns_add_u32 s22, s22, 0x%x\nv_mov_b32 v7, 0\nv_mov_b32 v21, s22" % FLG)
    a("s_mul_i32 s22, s17, 224\ns_add_u32 s22, s22, %d\nv_add_u32 v6, s22, v6" % K3_CS)
    a("v_lshlrev_b32 v22, 3, v3\nv_add_u32 v22, v22, v4\nv_lshlrev_b32 v23, 2, v5\nv_add_u32 v22, v22, v23\nv_lshlrev_b32 v22, 3, v22")
    a("s_lshl_b32 s22, s17, 8\ns_add_u32 s22, s22, %d\nv_add_u32 v22, s22, v22" % K3_TAB)
    a("s_waitcnt vmcnt(%d)" % (16 + NPF))
    for st in (8, 4, 2, 1):
        for p in range(st): a("v_add_f32 v%d, v%d, v%d" % (40 + p, 40 + p, 40 + st + p))
    a("v_mov_b32 v41, v40\ns_nop 1\nv_permlane32_swap_b32 v40, v41")
    stats_finish(a, 40, 41, 42, 43, 1024)
    a("v_and_b32 v45, 0xffff0000, v40\nv_rcp_f32 v45, v45\nv_lshlrev_b32 v44, 16, v40\nv_xor_b32 v44, 0x80000000, v44")
    a("ds_write_b64 v22, v[44:45]")
    a("s_waitcnt vmcnt(%d)" % NPF)
    for st in (8, 4, 2, 1):
        for p in range(st): a("v_add_f32 v%d, v%d, v%d" % (24 + p, 24 + p, 24 + st + p))
    a("s_mov_b32 exec_hi, 0x00ffffff")
    a("ds_write_b32 v6, v24")
    a("s_cmp_eq_u32 s17, 0\ns_cbranch_scc0 K3_NOFLAG\ns_mov_b64 exec, 1")
    a("buffer_store_dword v7, v21, s[44:47], 0 offen")
    a("K3_NOFLAG:")
    a("s_mov_b64 exec, -1")
    stamp(a, 2)
    a("s_waitcnt lgkmcnt(0)\ns_barrier")
    stamp(a, 3)
    stamp_store(a, 2, 16, 8, 12)
    a("s_endpgm")
    a("K3_CONS:")
    a("s_setprio 2")
    a("s_and_b32 s17, s16, 1\ns_lshr_b32 s18, s16, 1")
    XA, WA, WB, WC = 8, 12, 13, 14
    a("v_lshlrev_b32 v6, 2, v2\nv_add_u32 v6, v6, v3\nv_and_b32 v7, 7, v6\nv_lshlrev_b32 v15, 3, v4\nv_lshl_add_u32 v6, v6, 8, v15")
    a("s_lshl_b32 s21, s17, 2\nv_xor_b32 v7, s21, v7\nv_lshl_add_u32 v%d, v7, 5, v6" % XA)
    for i in range(1, 4): a("v_xor_b32 v%d, %d, v%d" % (XA + i, 32 * i, XA))
    a("v_lshlrev_b32 v7, 5, v5")
    a("v_lshlrev_b32 v6, 2, v2\nv_add_u32 v6, v6, v3\nv_mul_u32_u24 v6, 448, v6\nv_add_u32 v6, v6, v15\nv_add_u32 v6, 8192, v6")
    a("s_lshl_b32 s21, s18, 8\nv_add_u32 v15, s21, v6\nv_add_u32 v%d, v15, v7\nv_sub_u32 v%d, v15, v7" % (WA, WB))
    a("s_add_u32 s21, s18, 6\nv_xor_b32 v15, s21, v5\nv_lshlrev_b32 v15, 5, v15\nv_add_u32 v%d, v6, v15" % WC)
    FS = [16, 60]; ACC = 104
    def reads(st, sub):
        r = []
        f = FS[st]
        for i in range(4):
            for h in range(2):
                r.append("ds_read_b64_tr_b16 %s, v%d offset:%d" % (vr(f + 4 * i + 2 * h, 2), XA + i, sub * K3_SUB + h * 4096))
        for i in range(7):
            for h in range(2):
                if i < 6: r.append("ds_read_b64_tr_b16 %s, v%d offset:%d" % (vr(f + 16 + 4 * i + 2 * h, 2), WA + (i & 1), sub * K3_SUB + h * 7168 + 32 * i))
                else: r.append("ds_read_b64_tr_b16 %s, v%d offset:%d" % (vr(f + 16 + 4 * i + 2 * h, 2), WC, sub * K3_SUB + h * 7168))
        return r
    seq = [(i, s) for s in range(4) for i in range(7)] if "ordA" not in OPT else [(i, s) for i in range(7) for s in range(4)]
    def phase(st, fill, first=False):
        f = FS[st]; k = 0
        for m, (i, s) in enumerate(seq):
            d = vr(ACC + 16 * i + 4 * s, 4)
            a("v_mfma_f32_16x16x32_bf16 %s, %s, %s, %s" % (d, vr(f + 16 + 4 * i, 4), vr(f + 4 * s, 4), "0" if first else d))
            upto = min(len(fill), (m + 1) * (2 if "fast" in OPT else 1)) if m < 27 else len(fill)
            while k < upto: a(fill[k]); k += 1
        assert k == len(fill)
    adv = ["v_add_u32 v%d, s35, v%d" % (v, v) for v in range(XA, WC + 1)]
    def sadv():
        a("s_add_u32 s34, s34, 1\ns_cmp_eq_u32 s34, %d\ns_cselect_b32 s35, s31, s30\ns_cselect_b32 s34, 0, s34" % K3_R)
    a("s_mov_b32 s34, 0\ns_mov_b32 s32, 1")
    a("s_waitcnt lgkmcnt(0)\ns_barrier")
    stamp(a, 1)
    if gen.STAMP: a("s_waitcnt lgkmcnt(0)")
    for r in reads(0, 0): a(r)
    sadv()
    a("s_waitcnt lgkmcnt(0)")
    phase(0, reads(1, 1) + adv, first=True)
    a("s_waitcnt lgkmcnt(0)\ns_barrier")
    phase(1, reads(0, 0))
    a("K3_CLOOP:")
    sadv()
    a("s_waitcnt lgkmcnt(0)")
    phase(0, reads(1, 1) + adv)
    a("s_waitcnt lgkmcnt(0)" + ("" if "nobar" in OPT else "\ns_barrier"))
    phase(1, reads(0, 0))
    a("s_add_u32 s32, s32, 1\ns_cmp_lt_u32 s32, %d\ns_cbranch_scc1 K3_CLOOP" % (K3_NST - 1))
    a("s_waitcnt lgkmcnt(0)")
    phase(0, reads(1, 1))
    a("s_waitcnt lgkmcnt(0)")
    phase(1, [])
    stamp(a, 2)
    a("s_add_u32 s8, s12, 0x%x\ns_addc_u32 s9, s13, 0" % H1)
    a.srd(36, 8, H1_BYTES)
    a("v_and_b32 v6, 15, v1\nv_lshlrev_b32 v6, 3, v6\ns_lshl_b32 s21, s17, 9\ns_add_u32 s21, s21, %d\nv_add_u32 v6, s21, v6" % K3_TAB)
    a("v_lshlrev_b32 v7, 4, v2\ns_lshl_b32 s21, s18, 9\ns_add_u32 s21, s21, %d\nv_add_u32 v8, s21, v7" % K3_CS)
    a("s_lshl_b32 s21, s18, 6\ns_add_u32 s21, s21, %d\nv_add_u32 v9, s21, v7" % (K3_CS + 384))
    a("s_mul_i32 s21, s14, 112\ns_mul_i32 s22, s15, 7\ns_add_u32 s21, s21, s22\ns_lshl_b32 s21, s21, 13\ns_lshl_b32 s22, s17, 12\ns_add_u32 s21, s21, s22")
    a("s_lshl_b32 s22, s18, 15\ns_add_u32 s22, s22, s21\nv_lshlrev_b32 v10, 4, v1\nv_add_u32 v11, s22, v10")
    a("s_lshl_b32 s22, s18, 3\ns_add_u32 s22, s22, s21\ns_add_u32 s22, s22, %d\nv_add_u32 v13, s22, v10" % (3 * 8192))
    a("s_mov_b32 s24, 0x%x\ns_mov_b32 s25, s24\ns_mov_b32 s26, 1.0\ns_mov_b32 s27, 1.0" % f32bits(-LOG2E))
    a("s_mov_b32 s28, 8192\ns_mov_b32 s29, 16384")
    a("s_waitcnt lgkmcnt(0)\ns_barrier")
    stamp(a, 3)
    RT = 16; CSR = 24
    for s in range(4): a("ds_read_b64 %s, v6 offset:%d" % (vr(RT + 2 * s, 2), 128 * s))
    for i in range(6): a("ds_read_b128 %s, v8 offset:%d" % (vr(CSR + 4 * i, 4), 64 * i))
    a("ds_read_b128 %s, v9" % vr(CSR + 24, 4))
    a("s_waitcnt lgkmcnt(0)")
    T = 56; PK = 72
    def silu2(tiles):
        zs = [(ACC + 16 * i + 4 * s, vr(RT + 2 * s, 2), CSR + 4 * i, T + 4 * n, dst) for n, (i, s, dst) in enumerate(tiles)]
        for z, rt, cs, t, dst in zs:
            for p in range(2): a("v_pk_fma_f32 %s, %s, %s, %s op_sel_hi:[1,0,1]" % (vr(z + 2 * p, 2), vr(cs + 2 * p, 2), rt, vr(z + 2 * p, 2)))
        for z, rt, cs, t, dst in zs:
            for p in range(2): a("v_pk_mul_f32 %s, %s, %s op_sel:[0,1] op_sel_hi:[1,1]" % (vr(z + 2 * p, 2), vr(z + 2 * p, 2), rt))
        for z, rt, cs, t, dst in zs:
            for p in range(2): a("v_pk_mul_f32 %s, %s, s[24:25]" % (vr(t + 2 * p, 2), vr(z + 2 * p, 2)))
        for z, rt, cs, t, dst in zs:
            for r in range(4): a("v_exp_f32 v%d, v%d" % (t + r, t + r))
        for z, rt, cs, t, dst in zs:
            for p in range(2): a("v_pk_add_f32 %s, %s, s[26:27]" % (vr(t + 2 * p, 2), vr(t + 2 * p, 2)))
        for z, rt, cs, t, dst in zs:
            for r in range(4): a("v_rcp_f32 v%d, v%d" % (t + r, t + r))
        for z, rt, cs, t, dst in zs:
            for p in range(2): a("v_pk_mul_f32 %s, %s, %s" % (vr(z + 2 * p, 2), vr(z + 2 * p, 2), vr(t + 2 * p, 2)))
        for z, rt, cs, t, dst in zs:
            a("v_cvt_pk_bf16_f32 v%d, v%d, v%d\nv_cvt_pk_bf16_f32 v%d, v%d, v%d" % (dst, z, z + 1, dst + 1, z + 2, z + 3))
    n = 0
    for pr in range(3):
        for s in range(4):
            d = PK + 4 * (n % 8); n += 1
            silu2([(2 * pr, s, d), (2 * pr + 1, s, d + 2)])
            a("buffer_store_dwordx4 %s, v%d, s[36:39], %s offen offset:%d" % (vr(d, 4), 11, ["0", "s28", "s29"][pr], 1024 * s))
    for s in (0, 2):
        d = PK + 4 * (n % 8); n += 1
        silu2([(6, s, d), (6, s + 1, d + 2)])
        a("buffer_store_dwordx2 %s, v13, s[36:39], 0 offen offset:%d" % (vr(d, 2), 1024 * s))
        a("buffer_store_dwordx2 %s, v13, s[36:39], 0 offen offset:%d" % (vr(d + 2, 2), 1024 * s + 1024))
    stamp(a, 4)
    if gen.STAMP: a("s_waitcnt vmcnt(0)")
    stamp(a, 5)
    stamp_store(a, 2, 16, 8, 12)
    a("K3_END:\ns_endpgm")

K4_SUB = 16384; K4_STG = 32768; K4_R = 4
K4_RES = K4_STG * K4_R
K4_LDS = K4_RES + 16384
K4_NST = 28

def gen_k4(a):
    a.begin("k4_kernel", 256, 512, K4_LDS, vgpr=192, sgpr=96)
    a("s_cmp_ge_u32 s2, 256\ns_cbranch_scc1 K4_END")
    for i in range(8): stamp(a, i)
    a("s_load_dwordx4 s[4:7], s[0:1], 64\ns_load_dwordx2 s[12:13], s[0:1], 88")
    a("s_and_b32 s8, s2, 7\ns_lshr_b32 s9, s2, 3")
    a("s_and_b32 s19, s8, 1")
    a("s_lshr_b32 s14, s8, 1\ns_lshl_b32 s14, s14, 2\ns_and_b32 s15, s9, 3\ns_add_u32 s14, s14, s15")
    a("s_lshr_b32 s15, s9, 2")
    a("v_lshrrev_b32 v6, 6, v0")
    lane_parts(a)
    a("v_readfirstlane_b32 s16, v6")
    a("s_mov_b32 s30, %d\ns_mov_b32 s31, %d" % (K4_STG, -(K4_R - 1) * K4_STG & 0xffffffff))
    a("s_cmp_lt_u32 s16, 4\ns_cbranch_scc1 K4_CONS")
    if "k4e3" in OPT: a("s_endpgm")
    a("s_sub_u32 s17, s16, 4\ns_lshr_b32 s18, s17, 1\ns_and_b32 s20, s17, 1")
    a("v_lshlrev_b32 v8, 4, v1")
    a("s_mul_i32 s21, s14, 112\ns_mul_i32 s22, s19, 56\ns_add_u32 s22, s22, s18\ns_add_u32 s21, s21, s22\ns_lshl_b32 s21, s21, 13\ns_add_u32 s21, s21, 0x%x" % H1)
    a("s_mul_i32 s23, s15, 112\ns_add_u32 s23, s23, s22\ns_lshl_b32 s23, s23, 13\ns_add_u32 s23, s23, 0x%x" % W2P)
    a("s_cmp_eq_u32 s20, 0\ns_cselect_b32 s24, s21, s23")
    a("s_lshl_b32 s21, s15, 7\ns_lshl_b32 s22, s19, 6\ns_add_u32 s21, s21, s22\ns_lshl_b32 s22, s17, 4\ns_add_u32 s21, s21, s22\ns_lshl_b32 s21, s21, 8")
    a("s_lshl_b32 s22, s14, 18\ns_add_u32 s21, s21, s22\ns_add_u32 s25, s21, 0x%x" % HT)
    a("s_lshl_b32 s27, s17, 13\ns_mov_b32 s28, s27\ns_add_u32 s29, s27, %d" % (K4_R * K4_STG))
    a("s_waitcnt lgkmcnt(0)")
    a.srd(36, 12, WS_BYTES)
    TOUCH = "touch" in OPT
    TD = 3
    if TOUCH:
        a("s_mul_i32 s40, s17, 12\nv_add_u32 v9, s40, v1\nv_lshlrev_b32 v10, 7, v9")
        a("s_mul_i32 s40, s14, 112\ns_mul_i32 s41, s19, 56\ns_add_u32 s40, s40, s41\ns_lshl_b32 s40, s40, 13\ns_lshl_b32 s42, s15, 11\ns_add_u32 s40, s40, s42\ns_add_u32 s40, s40, 0x%x" % H1)
        a("s_mul_i32 s42, s15, 112\ns_add_u32 s42, s42, s41\ns_lshl_b32 s42, s42, 13\ns_and_b32 s43, s14, 3\ns_lshl_b32 s43, s43, 12\ns_add_u32 s42, s42, s43\ns_add_u32 s42, s42, 0x%x" % (W2P - 2048))
        a("v_add_u32 v11, s40, v10\nv_add_u32 v10, s42, v10\nv_cmp_gt_u32 vcc, 16, v9\ns_nop 1\nv_cndmask_b32 v10, v10, v11, vcc")
        a("s_mov_b32 s44, %d\ns_mov_b32 s45, %d" % (16384 * TD, 16384 * (K4_NST - 1)))
    def stage():
        a("s_mov_b32 m0, s28\ns_add_u32 s28, s28, %d" % K4_STG)
        for i in range(8):
            if i == 4: a("s_add_u32 m0, m0, 4096\ns_add_u32 s24, s24, 4096")
            a("buffer_load_dwordx4 v8, s[36:39], s24 offen offset:%d lds" % (1024 * (i % 4)))
        a("s_add_u32 s24, s24, %d" % (12288 if "k4e2" not in OPT else -4096 & 0xffffffff))
        a("s_cmp_ge_u32 s28, s29\ns_cselect_b32 s28, s27, s28")
        if TOUCH:
            a("s_mov_b64 exec, 0xfff\nbuffer_load_dword v12, v10, s[36:39], s44 offen\ns_mov_b64 exec, -1\ns_add_u32 s44, s44, 16384\ns_min_u32 s44, s44, s45")
    NP = 9 if TOUCH else 8
    X1 = NP - 8
    stage()
    stage()
    stamp(a, 1)
    a("s_waitcnt vmcnt(%d)\ns_barrier" % (NP + X1))
    stage()
    a("s_waitcnt vmcnt(%d)\ns_barrier" % (NP + X1))
    a("s_lshl_b32 s21, s17, 12\ns_add_u32 m0, s21, %d\ns_nop 0" % K4_RES)
    for i in range(4): a("buffer_load_dwordx4 v8, s[36:39], s25 offen offset:%d lds" % (1024 * i))
    stage()
    LA = K4_R - 1
    a("s_waitcnt vmcnt(%d)\ns_barrier" % (NP + X1 + 4))
    stage()
    if LA == 3: stage()
    a("s_mov_b32 s32, 3")
    a("K4_LLOOP:")
    a("s_waitcnt vmcnt(%d)\ns_barrier" % (NP * (LA - 1) + X1))
    stage()
    a("s_add_u32 s32, s32, 1\ns_cmp_lt_u32 s32, %d\ns_cbranch_scc1 K4_LLOOP" % (K4_NST - LA))
    for k in range(LA - 1, -1, -1):
        a("s_waitcnt vmcnt(%d)\ns_barrier" % (NP * k + X1))
    stamp(a, 2)
    stamp_store(a, 3, 16, 8, 12)
    a("s_endpgm")
    a("K4_CONS:")
    a("s_setprio 2")
    a("s_and_b32 s17, s16, 1\ns_lshr_b32 s18, s16, 1")
    HA, WK0, WK1, WS0, WS1 = 8, 9, 10, 11, 12
    a("v_lshlrev_b32 v%d, 4, v1\ns_lshl_b32 s21, s17, 12\nv_add_u32 v%d, s21, v%d" % (HA, HA, HA))
    a("v_lshlrev_b32 v6, 2, v2\nv_add_u32 v6, v6, v3\nv_and_b32 v7, 7, v6\nv_lshlrev_b32 v13, 3, v4\nv_lshl_add_u32 v6, v6, 8, v13\nv_lshl_add_u32 v14, v7, 5, v6")
    a("s_lshl_b32 s21, s18, 6\ns_lshl_b32 s22, s19, 7\ns_add_u32 s21, s21, s22\nv_xor_b32 v%d, s21, v14\nv_add_u32 v%d, 8192, v%d" % (WK0, WK0, WK0))
    a("v_xor_b32 v%d, 32, v%d\nv_xor_b32 v%d, 128, v%d\nv_xor_b32 v%d, 160, v%d" % (WK1, WK0, WS0, WK0, WS1, WK0))
    FS = [16, 48]; ACC = 80
    def reads(st, sub):
        r = []; f = FS[st]
        for i in range(4):
            r.append("ds_read_b128 %s, v%d offset:%d" % (vr(f + 4 * i, 4), HA, sub * K4_SUB + 1024 * i))
        for i in range(4):
            for h in range(2):
                r.append("ds_read_b64_tr_b16 %s, v%d offset:%d" % (vr(f + 16 + 4 * i + 2 * h, 2), WK0 + i, sub * K4_SUB + h * 4096))
        return r
    def phase(st, rds, first=False, extra=()):
        f = FS[st]; rds = list(rds); extra = list(extra); k = 0
        for i in range(4):
            for s in range(4):
                d = vr(ACC + 16 * i + 4 * s, 4)
                a("v_mfma_f32_16x16x32_bf16 %s, %s, %s, %s" % (d, vr(f + 16 + 4 * i, 4), vr(f + 4 * s, 4), "0" if first else d))
                if k < len(rds): a(rds[k]); k += 1
                elif extra:
                    a(extra.pop(0))
                    if len(extra) > 15 - (4 * i + s): a(extra.pop(0))
        assert k == len(rds) and not extra
    adv = ["v_add_u32 v%d, s35, v%d" % (v, v) for v in range(HA, WS1 + 1)]
    def sadv():
        a("s_add_u32 s34, s34, 1\ns_cmp_eq_u32 s34, %d\ns_cselect_b32 s35, s31, s30\ns_cselect_b32 s34, 0, s34" % K4_R)
    a("s_mov_b32 s34, 0\ns_mov_b32 s32, 1")
    a("s_waitcnt lgkmcnt(0)\ns_barrier")
    stamp(a, 1)
    if gen.STAMP: a("s_waitcnt lgkmcnt(0)")
    for r in reads(0, 0): a(r)
    sadv()
    a("s_waitcnt lgkmcnt(0)")
    phase(0, reads(1, 1), first=True, extra=adv)
    a("s_waitcnt lgkmcnt(0)\ns_barrier")
    phase(1, reads(0, 0))
    a("K4_CLOOP:")
    sadv()
    a("s_waitcnt lgkmcnt(0)")
    phase(0, reads(1, 1), extra=adv)
    a("s_waitcnt lgkmcnt(0)\ns_barrier")
    phase(1, reads(0, 0))
    a("s_add_u32 s32, s32, 1\ns_cmp_lt_u32 s32, %d\ns_cbranch_scc1 K4_CLOOP" % (K4_NST - 1))
    a("s_waitcnt lgkmcnt(0)")
    phase(0, reads(1, 1))
    a("s_waitcnt lgkmcnt(0)")
    phase(1, [])
    stamp(a, 2)
    a.srd(36, 12, WS_BYTES)
    a.srd(40, 6, MB4)
    a("s_lshl_b32 s21, s2, 15\ns_lshl_b32 s22, s16, 13\ns_add_u32 s21, s21, s22\ns_add_u32 s21, s21, 0x%x" % PX)
    a("v_lshlrev_b32 v8, 4, v1\nv_add_u32 v9, s21, v8")
    a("s_xor_b32 s21, s21, 0x8000\nv_add_u32 v10, s21, v8\ns_mov_b32 s22, 4096")
    a("s_lshl_b32 s21, s18, 13\ns_add_u32 s21, s21, %d\ns_lshl_b32 s23, s17, 7\nv_xor_b32 v14, s23, v14\nv_add_u32 v14, s21, v14" % K4_RES)
    a("v_xor_b32 v15, 32, v14\nv_xor_b32 v12, 64, v14\nv_xor_b32 v13, 96, v14")
    for j in range(8):
        a("buffer_store_dwordx4 %s, v9, s[36:39], %s offen offset:%d sc1" % (vr(ACC + 32 + 4 * j, 4), "0" if j < 4 else "s22", 1024 * (j % 4)))
    RS = 16
    for i in range(2):
        for s in range(4):
            a("ds_read_b64_tr_b16 %s, v%d offset:%d" % (vr(RS + 8 * i + 2 * s, 2), [14, 15, 12, 13][s], 4096 * i))
    a("v_and_b32 v11, 15, v1\nv_lshlrev_b32 v11, 11, v11\nv_lshlrev_b32 v12, 5, v5\nv_lshrrev_b32 v13, 1, v2\nv_lshlrev_b32 v13, 4, v13\nv_add3_u32 v11, v11, v12, v13")
    a("s_lshl_b32 s21, s14, 18\ns_lshl_b32 s23, s17, 17\ns_add_u32 s21, s21, s23\ns_lshl_b32 s23, s15, 8\ns_add_u32 s21, s21, s23")
    a("s_lshl_b32 s23, s19, 7\ns_add_u32 s21, s21, s23\ns_lshl_b32 s23, s18, 6\ns_add_u32 s21, s21, s23\nv_add_u32 v11, s21, v11")
    a("s_lshl_b32 s21, s2, 8\ns_add_u32 s21, s21, 0x%x\nv_mov_b32 v12, s21\ns_xor_b32 s21, s21, 256\nv_mov_b32 v13, s21\nv_mov_b32 v32, 1" % FLG)
    a("s_waitcnt vmcnt(0)\ns_barrier")
    stamp(a, 3)
    a("s_cmp_eq_u32 s16, 0\ns_cbranch_scc0 K4_WAITED")
    a("s_mov_b64 exec, 1")
    a("buffer_store_dword v32, v12, s[36:39], 0 offen sc1")
    a("s_mov_b32 s23, 0")
    a("K4_POLL:")
    a("buffer_load_dword v33, v13, s[36:39], 0 offen sc1\ns_waitcnt vmcnt(0)")
    a("v_readfirstlane_b32 s21, v33\ns_nop 0\ns_cmp_eq_u32 s21, 1\ns_cbranch_scc1 K4_GOT\ns_sleep 1\ns_add_u32 s23, s23, 1\ns_cmp_lt_u32 s23, 0x400000\ns_cbranch_scc1 K4_POLL")
    a("K4_GOT:\ns_mov_b64 exec, -1")
    a("K4_WAITED:")
    a("s_barrier")
    stamp(a, 4)
    PO = 48
    for j in range(8):
        a("buffer_load_dwordx4 %s, v10, s[36:39], %s offen offset:%d sc1" % (vr(PO + 4 * j, 4), "0" if j < 4 else "s22", 1024 * (j % 4)))
    a("s_mov_b32 s33, 0xffff0000\ns_mov_b32 s24, 32768\ns_mov_b32 s25, 65536\ns_mov_b32 s26, 98304")
    a("s_waitcnt lgkmcnt(0)")
    T = 112; OUT = 144
    for s in range(4):
        a("s_waitcnt vmcnt(%d)" % (3 - s + s))
        for i in range(2):
            z = ACC + 16 * i + 4 * s; p = PO + 16 * i + 4 * s; t = T + 8 * i; r = RS + 8 * i + 2 * s
            for e in range(4): a("v_add_f32 v%d, v%d, v%d" % (z + e, z + e, p + e))
            a("v_cvt_pk_bf16_f32 v%d, v%d, v%d\nv_cvt_pk_bf16_f32 v%d, v%d, v%d" % (z, z, z + 1, z + 2, z + 2, z + 3))
            a("v_and_b32 v%d, s33, v%d\nv_lshlrev_b32 v%d, 16, v%d" % (z + 1, z, z, z))
            a("v_and_b32 v%d, s33, v%d\nv_lshlrev_b32 v%d, 16, v%d" % (z + 3, z + 2, z + 2, z + 2))
            a("v_lshlrev_b32 v%d, 16, v%d\nv_and_b32 v%d, s33, v%d" % (t, r, t + 1, r))
            a("v_lshlrev_b32 v%d, 16, v%d\nv_and_b32 v%d, s33, v%d" % (t + 2, r + 1, t + 3, r + 1))
            for e in range(4): a("v_add_f32 v%d, v%d, v%d" % (z + e, z + e, t + e))
            o = OUT + 4 * s + 2 * i
            a("v_cvt_pk_bf16_f32 v%d, v%d, v%d\nv_cvt_pk_bf16_f32 v%d, v%d, v%d" % (o, z, z + 1, o + 1, z + 2, z + 3))
        o = OUT + 4 * s
        a("s_nop 1")
        a("v_permlane16_swap_b32 v%d, v%d\nv_permlane16_swap_b32 v%d, v%d" % (o, o + 2, o + 1, o + 3))
        a("buffer_store_dwordx4 %s, v11, s[40:43], %s offen" % (vr(o, 4), ["0", "s24", "s25", "s26"][s]))
    stamp(a, 5)
    if gen.STAMP: a("s_waitcnt vmcnt(0)")
    stamp(a, 6)
    stamp_store(a, 3, 16, 8, 12)
    a("K4_END:\ns_endpgm")

if __name__ == "__main__":
    gen.STAMP = "s_memrealtime" if "--stamp" in sys.argv else ("s_memtime" if "--stampc" in sys.argv else False)
    OPT.update(x[2:] for x in sys.argv[1:] if x.startswith("--"))
    a = Asm()
    gen_k1(a)
    gen_k2(a, prefetch="--nopf" not in sys.argv)
    gen_k3(a)
    if "--no4" not in sys.argv: gen_k4(a)
    hdr = open("sequential_preLN__ssm_conv_h3__dense_activation_silu__prompt.s.ref").read().split("; Override launch")[0]
    sys.stdout.write(a.text(hdr))
```

```python
import sys
from asmlib import Asm

KVB = 0x000000
XB  = 0x400000
ST1 = 0x800000
HT  = 0xC00000
H1  = 0x1000000
H1_BYTES = 16 * 112 * 8 * 1024
PX  = 0x2000000
FLG = 0x2800000
MB4 = 0x400000
W1P = 0x3000000
W2P = 0x3800000
WS_BYTES = 0x4000000
CNT = 0x980000
XSP = 0x9A0000
OPT = set()
ONES = 0x3f803f80

def sflag(k):
    for o, f in (("sc01", " sc0 sc1"), ("sc1", " sc1"), ("nt", " nt")):
        if k + o in OPT: return f
    return ""
def vr(b, n):
    return "v[%d:%d]" % (b, b + n - 1) if n > 1 else "v%d" % b
def sr(b, n):
    return "s[%d:%d]" % (b, b + n - 1) if n > 1 else "s%d" % b

STAMP = False
STB = 0x4000000
def stamp(a, i):
    if STAMP: a("%s s[%d:%d]" % (STAMP, 70 + 2 * i, 71 + 2 * i))
def stamp_store(a, kidx, wavesgpr, nw, ws_lo):
    if not STAMP: return
    a("s_waitcnt lgkmcnt(0)")
    a("s_mul_i32 s86, s2, %d\ns_add_u32 s86, s86, s%d\ns_lshl_b32 s86, s86, 5\ns_add_u32 s86, s86, 0x%x" % (nw, wavesgpr, STB + kidx * 0x100000))
    a("s_mov_b64 exec, 1")
    a("v_mov_b32 v1, s86")
    for i in range(8): a("v_mov_b32 v%d, s%d" % (2 + i, 70 + 2 * i))
    a("global_store_dwordx4 v1, v[2:5], s[%d:%d]\nglobal_store_dwordx4 v1, v[6:9], s[%d:%d] offset:16" % (ws_lo, ws_lo + 1, ws_lo, ws_lo + 1))

def stats_finish(a, S, Q, T1, T2, n):
    a("v_mul_f32 v%d, 0x%x, v%d" % (S, f32bits(1.0 / n), S))
    a("v_mul_f32 v%d, 0x%x, v%d" % (Q, f32bits(1.0 / n), Q))
    a("v_fma_f32 v%d, -v%d, v%d, v%d" % (Q, S, S, Q))
    a("v_max_f32 v%d, 0, v%d" % (Q, Q))
    a("v_cvt_pk_bf16_f32 v%d, v%d, v%d" % (T1, Q, Q))
    a("v_lshlrev_b32 v%d, 16, v%d" % (T1, T1))
    a("v_add_f32 v%d, 0x%x, v%d" % (T1, f32bits(1e-5), T1))
    a("v_cvt_pk_bf16_f32 v%d, v%d, v%d" % (T1, T1, T1))
    a("v_lshlrev_b32 v%d, 16, v%d" % (T1, T1))
    a("v_sqrt_f32 v%d, v%d" % (T1, T1))
    a("s_nop 0")
    a("v_cvt_pk_bf16_f32 v%d, v%d, v%d" % (S, S, T1))

import struct
def f32bits(x):
    return struct.unpack("<I", struct.pack("<f", x))[0]

def gen_k1(a):
    a.begin("k1_kernel", 256, 256, 512, vgpr=184, sgpr=64)
    a("s_cmp_ge_u32 s2, 256\ns_cbranch_scc1 K1_END")
    a("s_load_dwordx4 s[4:7], s[0:1], 0\ns_load_dwordx4 s[24:27], s[0:1], 16\ns_load_dwordx2 s[28:29], s[0:1], 88\ns_load_dwordx2 s[44:45], s[0:1], 32")
    a("s_lshl_b32 s3, s2, 14")
    a("v_lshlrev_b32 v1, 3, v0\nv_add_u32 v1, s3, v1")
    a("v_add_u32 v2, 0xffffe800, v1")
    a("v_add_u32 v3, 0xfffff800, v1")
    a("v_lshlrev_b32 v4, 5, v0")
    a("s_mov_b32 s30, 4096\ns_mov_b32 s31, 8192\ns_mov_b32 s32, 12288")
    a("s_waitcnt lgkmcnt(0)")
    a.srd(8, 4, MB4); a.srd(12, 6, MB4); a.srd(16, 24, MB4); a.srd(20, 26, 8192); a.srd(36, 28, 0x1000000)
    KR, VR, XR, SH = 10, 32, 48, 64
    NT = "" if "nont" in OPT else " nt"
    def rowload(dst, srd, r):
        so = ["0", "s30", "s31", "s32"][r // 2]
        a("buffer_load_dwordx2 %s, v1, %s, %s offen offset:%d%s" % (vr(dst, 2), sr(srd, 4), so, (r % 2) * 2048, NT))
    a("buffer_load_dwordx4 %s, v4, s[20:23], 0 offen" % vr(SH, 4))
    a("buffer_load_dwordx4 %s, v4, s[20:23], 0 offen offset:16" % vr(SH + 4, 4))
    a("buffer_load_dwordx2 %s, v2, s[12:15], 0 offen%s" % (vr(KR, 2), NT))
    a("buffer_load_dwordx2 %s, v2, s[12:15], 0 offen offset:2048%s" % (vr(KR + 2, 2), NT))
    a("buffer_load_dwordx2 %s, v3, s[12:15], 0 offen%s" % (vr(KR + 4, 2), NT))
    for r in range(8): rowload(KR + 6 + 2 * r, 12, r)
    for r in range(8): rowload(VR + 2 * r, 16, r)
    for r in range(8): rowload(XR + 2 * r, 8, r)
    NP = 0
    a("s_mov_b32 s33, 0xffff0000\ns_mov_b32 s34, 0x05040100\ns_mov_b32 s35, 0x07060302\ns_mov_b32 s40, 0x%x" % ONES)
    a("v_lshlrev_b32 v5, 4, v0\nv_add_u32 v5, s3, v5")
    if "nok1pf" not in OPT:
        a.srd(48, 44, MB4)
        for c in range(4):
            a("buffer_load_dwordx4 %s, v5, s[48:51], %s offen" % (vr(164 + 4 * c, 4), ["0", "s30", "s31", "s32"][c]))
        NP = 4
    a("s_lshl_b32 s41, s2, 3\nv_add_u32 v5, s41, v0\nv_and_b32 v5, 255, v5\nv_lshlrev_b32 v5, 4, v5\nv_add_u32 v5, s3, v5")
    WF, KF, KS = 72, 88, 132
    a("s_waitcnt vmcnt(%d)" % (27 + NP))
    for c in range(4):
        for j in range(4):
            src = SH + 2 * c + j // 2
            if j % 2 == 0: a("v_lshlrev_b32 v%d, 16, v%d" % (WF + 4 * j + c, src))
            else: a("v_and_b32 v%d, s33, v%d" % (WF + 4 * j + c, src))
    def unpack(dst, src):
        a("v_lshlrev_b32 v%d, 16, v%d\nv_and_b32 v%d, s33, v%d" % (dst, src, dst + 1, src))
        a("v_lshlrev_b32 v%d, 16, v%d\nv_and_b32 v%d, s33, v%d" % (dst + 2, src + 1, dst + 3, src + 1))
    a("s_waitcnt vmcnt(%d)" % (16 + NP))
    for r in range(11): unpack(KF + 4 * r, KR + 2 * r)
    for r in range(8):
        for j in (3, 2, 1, 0):
            for p in range(2):
                d = KS + 4 * r + 2 * p; w = WF + 4 * j + 2 * p; k = KF + 4 * (r + 3 - j) + 2 * p
                if j == 3: a("v_pk_mul_f32 %s, %s, %s" % (vr(d, 2), vr(w, 2), vr(k, 2)))
                else: a("v_pk_fma_f32 %s, %s, %s, %s" % (vr(d, 2), vr(w, 2), vr(k, 2), vr(d, 2)))
    a("s_waitcnt vmcnt(%d)" % (8 + NP))
    VF = KF
    for r in range(8): unpack(VF + 4 * r, VR + 2 * r)
    for r in range(8):
        for p in range(2):
            d = KS + 4 * r + 2 * p
            a("v_pk_mul_f32 %s, %s, %s" % (vr(d, 2), vr(d, 2), vr(VF + 4 * r + 2 * p, 2)))
    G = 10
    G = 12
    for c in range(4):
        for d in range(4):
            a("v_cvt_pk_bf16_f32 v%d, v%d, v%d" % (G + 4 * c + d, KS + 4 * (7 - 2 * d) + c, KS + 4 * (6 - 2 * d) + c))
    for c in range(4):
        so = ["0", "s30", "s31", "s32"][c]
        a("buffer_store_dwordx4 %s, v5, s[36:39], %s offen%s" % (vr(G + 4 * c, 4), so, sflag("k1")))
    a("v_add_u32 v6, 0x%x, v5" % XB)
    a("s_waitcnt vmcnt(%d)" % (4 + NP))
    G2 = 72
    for c in range(4):
        for d in range(4):
            a("v_perm_b32 v%d, v%d, v%d, s%d" % (G2 + 4 * c + d, XR + 2 * (2 * d + 1) + c // 2, XR + 2 * (2 * d) + c // 2, 34 + (c & 1)))
    for c in range(4):
        so = ["0", "s30", "s31", "s32"][c]
        a("buffer_store_dwordx4 %s, v6, s[36:39], %s offen%s" % (vr(G2 + 4 * c, 4), so, sflag("k1")))
    R = 88
    for r in range(8):
        a("v_dot2_f32_bf16 v%d, v%d, s40, 0" % (R + r, XR + 2 * r))
        a("v_dot2_f32_bf16 v%d, v%d, v%d, 0" % (R + 8 + r, XR + 2 * r, XR + 2 * r))
    for r in range(8):
        a("v_dot2_f32_bf16 v%d, v%d, s40, v%d" % (R + r, XR + 2 * r + 1, R + r))
        a("v_dot2_f32_bf16 v%d, v%d, v%d, v%d" % (R + 8 + r, XR + 2 * r + 1, XR + 2 * r + 1, R + 8 + r))
    a("s_nop 2")
    for i in range(8): a("v_permlane32_swap_b32 v%d, v%d" % (R + i, R + 8 + i))
    for i in range(8): a("v_add_f32 v%d, v%d, v%d" % (R + i, R + i, R + 8 + i))
    a("s_nop 1")
    for i in range(4): a("v_permlane16_swap_b32 v%d, v%d" % (R + i, R + 4 + i))
    for i in range(4): a("v_add_f32 v%d, v%d, v%d" % (R + i, R + i, R + 4 + i))
    for sh in (8, 4, 2, 1):
        for i in range(4):
            a("v_add_f32_dpp v%d, v%d, v%d row_ror:%d row_mask:0xf bank_mask:0xf" % (R + i, R + i, R + i, sh))
    a("v_and_b32 v7, 15, v0\nv_cmp_eq_u32 vcc, 0, v7\nv_and_b32 v8, 0xf0, v0")
    a("s_and_saveexec_b64 s[42:43], vcc")
    a("ds_write_b128 v8, %s" % vr(R, 4))
    a("s_mov_b64 exec, s[42:43]")
    a("s_waitcnt lgkmcnt(0)\ns_barrier")
    a("v_cmp_gt_u32 vcc, 8, v0\ns_and_saveexec_b64 s[42:43], vcc\ns_cbranch_execz K1_END")
    a("v_lshlrev_b32 v8, 2, v0")
    for w in range(4):
        a("ds_read_b32 v%d, v8 offset:%d\nds_read_b32 v%d, v8 offset:%d" % (R + w, 64 * w, R + 4 + w, 64 * w + 32))
    a("s_lshl_b32 s3, s2, 5\ns_add_u32 s3, s3, 0x%x\nv_add_u32 v8, s3, v8" % ST1)
    a("s_waitcnt lgkmcnt(0)")
    a("v_add_f32 v%d, v%d, v%d\nv_add_f32 v%d, v%d, v%d\nv_add_f32 v%d, v%d, v%d" % (R, R, R + 1, R + 2, R + 2, R + 3, R, R, R + 2))
    a("v_add_f32 v%d, v%d, v%d\nv_add_f32 v%d, v%d, v%d\nv_add_f32 v%d, v%d, v%d" % (R + 4, R + 4, R + 5, R + 6, R + 6, R + 7, R + 4, R + 4, R + 6))
    stats_finish(a, R, R + 4, R + 5, R + 6, 1024)
    a("buffer_store_dword v%d, v8, s[36:39], 0 offen" % R)
    a("s_cmp_lt_u32 s2, 16\ns_cbranch_scc0 K1_END\ns_mov_b64 exec, 1")
    a("s_lshl_b32 s3, s2, 8\ns_add_u32 s3, s3, 0x%x\nv_mov_b32 v8, s3\nv_mov_b32 v9, 0" % CNT)
    a("buffer_store_dword v9, v8, s[36:39], 0 offen")
    a("K1_END:\ns_endpgm")

K2_KC = 0; K2_CS = 4160; K2_CH = 4 * K2_CS
K2_U = 4 * K2_CH
K2_X = K2_U + 288 * 64
K2_ST = K2_X + 16384
K2_RED = K2_ST + 8192
K2_CSUM = K2_RED + 32768
K2_FL = K2_CSUM + 8192
K2_LDS = K2_FL + 64
CSP = 0x900000

def gen_k2(a, prefetch=True):
    a.begin("k2_kernel", 256, 768, K2_LDS, vgpr=160, sgpr=96)
    a("s_cmp_ge_u32 s2, 256\ns_cbranch_scc1 K2_END")
    for i in range(8): stamp(a, i)
    a("s_load_dwordx4 s[4:7], s[0:1], 32\ns_load_dwordx4 s[8:11], s[0:1], 56\ns_load_dwordx2 s[12:13], s[0:1], 88")
    a("s_and_b32 s14, s2, 7\ns_lshl_b32 s14, s14, 5\ns_lshr_b32 s15, s2, 3\ns_add_u32 s14, s14, s15")
    a("s_lshr_b32 s15, s14, 6\ns_and_b32 s14, s14, 63")
    a("v_lshrrev_b32 v2, 6, v0\nv_and_b32 v1, 63, v0\ns_nop 0\nv_readfirstlane_b32 s16, v2")
    a("s_nop 1")
    a("s_cmp_lt_u32 s16, 8\ns_cbranch_scc1 K2_COMP")
    a("s_sub_u32 s17, s16, 8")
    a("v_lshrrev_b32 v2, 4, v1\nv_and_b32 v3, 3, v1\nv_xor_b32 v2, v2, v3\ns_lshl_b32 s21, s14, 2\nv_add_u32 v2, s21, v2")
    a("v_lshrrev_b32 v3, 2, v1\ns_lshl_b32 s20, s17, 6\nv_add_u32 v3, s20, v3\ns_lshl_b32 s20, s15, 12")
    a("v_lshl_add_u32 v4, v3, 3, v2\nv_and_b32 v4, 255, v4\nv_lshlrev_b32 v4, 4, v4\nv_lshlrev_b32 v5, 14, v3\nv_add3_u32 v4, v4, v5, s20")
    a("v_xor_b32 v15, 2048, v4")
    a("v_sub_u32 v3, 207, v3")
    a("v_lshl_add_u32 v5, v3, 3, v2\nv_and_b32 v5, 255, v5\nv_lshlrev_b32 v5, 4, v5\nv_lshlrev_b32 v3, 14, v3\nv_add3_u32 v5, v5, v3, s20")
    a("v_xor_b32 v3, 2048, v5")
    a("s_waitcnt lgkmcnt(0)")
    a.srd(28, 12, WS_BYTES)
    for qq in range(4):
        a("s_mov_b32 s21, 0x%x" % ((3 - qq) * 0x40000))
        a("s_lshl_b32 s20, s17, 12\ns_add_u32 m0, s20, %d\ns_nop 0" % (K2_U + 1024 * qq))
        a("buffer_load_dwordx4 v%d, s[28:31], s21 offen lds" % (5 if qq & 1 else 3))
    a("v_mov_b32 v8, 0\nv_mov_b32 v9, 0\nv_mov_b32 v10, 0\nv_mov_b32 v11, 0\nv_lshlrev_b32 v6, 4, v1")
    a("s_lshl_b32 s20, s17, 10\ns_add_u32 s20, s20, %d\nv_add_u32 v7, s20, v6" % (K2_U + 16384))
    a("s_cmp_lt_u32 s17, 2\ns_cbranch_scc0 K2_NOPAD")
    a("ds_write_b128 v7, v[8:11]")
    a("K2_NOPAD:")
    a("v_mov_b32 v7, %d\nds_write_b128 v7, v[8:11]\nds_write_b128 v7, v[8:11] offset:16\nds_write_b128 v7, v[8:11] offset:32" % K2_FL)
    a.srd(36, 8, 7340032)
    a("s_lshr_b32 s20, s2, 4\ns_lshl_b32 s20, s20, 6\ns_lshl_b32 s21, s17, 4\ns_add_u32 s20, s20, s21\ns_mul_i32 s20, s20, 7168")
    a("s_and_b32 s21, s2, 15\ns_mul_i32 s21, s21, 448\ns_add_u32 s20, s20, s21")
    a("v_lshrrev_b32 v12, 5, v1\nv_mul_u32_u24 v12, 7168, v12\nv_and_b32 v13, 31, v1\nv_lshlrev_b32 v14, 4, v13\nv_add3_u32 v12, v12, v14, s20")
    WD = 16
    NT = "" if "nont" in OPT else " nt"
    SF = " nt" if "stnt" in OPT else (" sc1" if "stsc1" in OPT else (" sc0 sc1" if "stsc01" in OPT else ""))
    a.srd(40, 10, 7340032)
    a("s_and_b32 s20, s2, 31\ns_mul_i32 s20, s20, 28\ns_mul_i32 s21, s17, 7\ns_add_u32 s26, s20, s21")
    a("s_lshr_b32 s27, s2, 5\ns_lshl_b32 s32, s26, 13\ns_lshl_b32 s21, s27, 8\ns_add_u32 s32, s32, s21")
    a("v_lshrrev_b32 v92, 4, v1\nv_and_b32 v93, 15, v1\nv_lshlrev_b32 v94, 1, v92\nv_xor_b32 v93, v93, v94")
    a("s_and_b32 s21, s26, 1\ns_lshl_b32 s21, s21, 3\nv_xor_b32 v93, s21, v93\nv_lshlrev_b32 v93, 4, v93\nv_lshl_add_u32 v92, v92, 11, v93\nv_xor_b32 v93, 128, v92")
    for i in range(7):
        a("buffer_load_dwordx4 %s, v%d, s[40:43], s32 offen%s\ns_add_u32 s32, s32, 8192" % (vr(64 + 4 * i, 4), 92 + (i & 1), NT))
    stamp(a, 1)
    a("s_waitcnt vmcnt(7) lgkmcnt(0)\ns_barrier")
    stamp(a, 2)
    for qq in range(4):
        a("s_mov_b32 s21, 0x%x" % (XB + qq * 0x40000))
        a("s_lshl_b32 s20, s17, 12\ns_add_u32 m0, s20, %d\ns_nop 0" % (K2_X + 1024 * qq))
        a("buffer_load_dwordx4 v%d, s[28:31], s21 offen lds" % (15 if qq & 1 else 4))
    for qq in range(2):
        a("s_lshl_b32 s20, s17, 11\ns_add_u32 m0, s20, %d\ns_add_u32 s21, s20, 0x%x" % (K2_ST + 1024 * qq, ST1 + 1024 * qq))
        a("buffer_load_dwordx4 v6, s[28:31], s21 offen lds")
    a("s_mul_i32 s35, s27, %d\ns_lshl_b32 s21, s26, 10\ns_add_u32 s35, s35, s21\ns_add_u32 s35, s35, 0x%x" % (3584 * 256, W2P))
    a("v_cmp_gt_u32 vcc, 28, v13\ns_and_saveexec_b64 s[22:23], vcc")
    for i in range(8):
        a("s_mov_b32 s21, %d" % (2 * i * 7168))
        a("buffer_load_dwordx4 %s, v12, s[36:39], s21 offen%s" % (vr(WD + 4 * i, 4), NT if "w1p" in OPT else ""))
    a("s_mov_b64 exec, s[22:23]")
    a("s_lshl_b32 s20, s17, 2\ns_add_u32 s20, s20, %d\nv_mov_b32 v7, s20\nv_mov_b32 v14, 1" % (K2_FL + 32))
    stamp(a, 3)
    a("s_waitcnt vmcnt(8)\nds_write_b32 v7, v14")
    stamp(a, 4)
    for i in range(7):
        a("buffer_store_dwordx4 %s, v6, s[28:31], s35 offen%s\ns_add_u32 s35, s35, 1024" % (vr(64 + 4 * i, 4), SF))
    a("s_mov_b32 s24, 0x00003f80\ns_mov_b32 s25, 0x3f800000")
    CA = 48
    if "w1p" in OPT:
        a("s_and_b32 s20, s2, 15\ns_lshl_b32 s20, s20, 10\ns_lshr_b32 s21, s2, 4\ns_lshl_b32 s21, s21, 6\ns_add_u32 s20, s20, s21\ns_lshl_b32 s21, s17, 4\ns_add_u32 s20, s20, s21")
        a("s_mul_i32 s34, s20, 448\ns_add_u32 s34, s34, 0x%x" % W1P)
        a("v_lshrrev_b32 v10, 5, v1\nv_mul_u32_u24 v10, 448, v10\nv_lshl_add_u32 v10, v13, 4, v10\nv_lshlrev_b32 v11, 4, v13\nv_xor_b32 v11, 32, v11")
        a("v_lshrrev_b32 v7, 5, v1\nv_mul_u32_u24 v7, 448, v7\nv_add_u32 v11, v11, v7")
        a("s_waitcnt vmcnt(0)")
        a("v_cmp_gt_u32 vcc, 28, v13\ns_and_saveexec_b64 s[22:23], vcc")
        for i in range(8):
            a("buffer_store_dwordx4 %s, v%d, s[28:31], s34 offen%s\ns_add_u32 s34, s34, 896" % (vr(WD + 4 * i, 4), 11 if i & 2 else 10, SF))
        a("s_mov_b64 exec, s[22:23]")
    else:
        a("s_waitcnt vmcnt(7)")
    for i in range(8):
        for d in range(4):
            for hh in range(2):
                c = CA + 2 * d + hh
                a("v_dot2_f32_bf16 v%d, v%d, s%d, %s" % (c, WD + 4 * i + d, 24 + hh, "0" if i == 0 else "v%d" % c))
    a("v_lshlrev_b32 v14, 5, v1\ns_lshl_b32 s20, s17, 11\ns_add_u32 s20, s20, %d\nv_add_u32 v14, s20, v14\ns_nop 0" % K2_CSUM)
    a("ds_write_b128 v14, %s\nds_write_b128 v14, %s offset:16" % (vr(CA, 4), vr(CA + 4, 4)))
    a("s_mul_i32 s20, s17, 224\nv_lshlrev_b32 v14, 2, v1\nv_add_u32 v14, s20, v14")
    a("s_lshr_b32 s20, s2, 4\ns_mul_i32 s20, s20, 14336\ns_and_b32 s21, s2, 15\ns_mul_i32 s21, s21, 896\ns_add_u32 s20, s20, s21\ns_add_u32 s20, s20, 0x%x" % CSP)
    stamp(a, 5)
    a("s_waitcnt lgkmcnt(0)\ns_barrier")
    stamp(a, 6)
    a("v_add_u32 v15, %d, v14" % K2_CSUM)
    for p in range(8): a("ds_read_b32 v%d, v15 offset:%d" % (16 + p, 1024 * p))
    a("s_mov_b32 exec_hi, 0x00ffffff\ns_waitcnt lgkmcnt(0)")
    for st in (4, 2, 1):
        for p in range(st): a("v_add_f32 v%d, v%d, v%d" % (16 + p, 16 + p, 16 + st + p))
    a("buffer_store_dword v16, v14, s[28:31], s20 offen")
    a("s_mov_b64 exec, -1")
    stamp(a, 7)
    stamp_store(a, 1, 16, 12, 12)
    a("s_endpgm")
    a("K2_COMP:")
    a("s_and_b32 s17, s16, 3\ns_lshr_b32 s18, s16, 2")
    a("s_lshl_b32 s19, s14, 4\ns_lshl_b32 s20, s17, 2\ns_add_u32 s19, s19, s20\ns_add_u32 s19, s19, s15")
    a("s_lshl_b32 s20, s18, 11\nv_lshlrev_b32 v3, 4, v1\nv_add_u32 v3, s20, v3")
    a("v_add_u32 v4, -8, v3")
    a("v_lshlrev_b32 v5, 4, v1\nv_add_u32 v5, 0xffffffe0, v5")
    a("v_cmp_eq_u32 vcc, 2, v1\nv_mov_b32 v6, 4096\ns_nop 0\nv_cndmask_b32 v5, v5, v6, vcc")
    a("v_add_u32 v6, -8, v5")
    a("s_waitcnt lgkmcnt(0)")
    a("s_lshl_b32 s20, s19, 12\ns_add_u32 s4, s4, s20\ns_addc_u32 s5, s5, 0")
    a.srd(24, 4, 4096)
    NTK = " nt" if ("nok1pf" in OPT and "nont" not in OPT) else ""
    DK = [48, 56, 64]
    a("buffer_load_dwordx4 %s, v3, s[24:27], 0 offen%s" % (vr(DK[0] + 4, 4), NTK))
    a("buffer_load_dwordx2 %s, v4, s[24:27], 0 offen%s" % (vr(DK[0] + 2, 2), NTK))
    a("buffer_load_dwordx4 %s, v3, s[24:27], 0 offen offset:1024%s" % (vr(DK[1] + 4, 4), NTK))
    a("buffer_load_dwordx2 %s, v3, s[24:27], 0 offen offset:1016%s" % (vr(DK[1] + 2, 2), NTK))
    a("s_mov_b64 exec, 7")
    a("buffer_load_dwordx4 %s, v5, s[24:27], 0 offen" % vr(DK[2] + 4, 4))
    a("buffer_load_dwordx2 %s, v6, s[24:27], 0 offen" % vr(DK[2] + 2, 2))
    a("s_mov_b64 exec, -1")
    a.srd(28, 12, WS_BYTES)
    a("s_lshl_b32 s20, s19, 1\ns_and_b32 s20, s20, 0xfffffffc\ns_add_u32 s6, s6, s20\ns_addc_u32 s7, s7, 0")
    a("s_load_dword s21, s[6:7], 0")
    a("s_mul_i32 s20, s17, %d\ns_add_u32 s20, s20, 32\nv_add_u32 v14, s20, v3\nv_add_u32 v15, s20, v5" % K2_CH)
    a("v_and_b32 v2, 15, v1\nv_lshrrev_b32 v3, 4, v1")
    a("v_and_b32 v4, 1, v3\nv_lshrrev_b32 v5, 1, v3")
    a("v_sub_u32 v6, 3, v2\nv_and_b32 v6, 3, v6\nv_mul_u32_u24 v6, %d, v6" % K2_CS)
    a("v_lshrrev_b32 v7, 2, v2\nv_lshlrev_b32 v7, 3, v7\nv_add_u32 v6, v6, v7")
    a("v_lshlrev_b32 v7, 5, v5\nv_add_u32 v6, v6, v7\nv_lshlrev_b32 v7, 4, v4\nv_sub_u32 v6, v6, v7")
    a("s_mul_i32 s20, s17, %d\ns_lshl_b32 s32, s18, 8\ns_add_u32 s20, s20, s32\ns_add_u32 s20, s20, 24\nv_add_u32 v6, s20, v6" % K2_CH)
    BA = 8
    a("v_lshlrev_b32 v7, 1, v5\nv_sub_u32 v7, v7, v4\nv_lshlrev_b32 v12, 1, v2\nv_sub_u32 v7, v7, v12")
    a("s_lshl_b32 s20, s18, 4\ns_add_u32 s20, s20, 31\nv_add_u32 v7, s20, v7\ns_mov_b32 s32, %d" % K2_U)
    for ee in range(4):
        a("v_add_u32 v12, %d, v7\nv_lshrrev_b32 v13, 2, v12\nv_and_b32 v13, 3, v13\nv_xor_b32 v13, s17, v13" % (4 * ee))
        a("v_lshlrev_b32 v13, 4, v13\nv_lshlrev_b32 v12, 6, v12\nv_add3_u32 v%d, v12, v13, s32" % (BA + ee))
    stamp(a, 1)
    T = 72
    for p in range(3):
        D = DK[p] + 4
        a("s_waitcnt vmcnt(%d)" % (4 - 2 * p))
        if p == 2: a("s_mov_b64 exec, 7")
        t = T + 12 * p
        for i in range(4): a("v_alignbit_b32 v%d, v%d, v%d, 16" % (t + i, D + i, D + i - 1))
        for i in range(4): a("v_mov_b32 v%d, v%d" % (t + 4 + i, D + i - 1))
        for i in range(4): a("v_alignbit_b32 v%d, v%d, v%d, 16" % (t + 8 + i, D + i - 1, D + i - 2))
        ad = "v14" if p < 2 else "v15"
        off = 1024 * p if p < 2 else 0
        a("ds_write_b128 %s, %s offset:%d" % (ad, vr(D, 4), off))
        for sg in range(1, 4):
            a("ds_write_b128 %s, %s offset:%d" % (ad, vr(t + 4 * (sg - 1), 4), off + sg * K2_CS))
    a("s_mov_b64 exec, -1")
    stamp(a, 2)
    a("s_waitcnt lgkmcnt(0)\ns_barrier")
    stamp(a, 3)
    if STAMP: a("s_waitcnt lgkmcnt(0)")
    ACC = 16; FR = 48
    def fr(gi): return FR + 8 * (gi % 12)
    def rd(gi):
        ee, n = divmod(gi, 8); f = fr(gi)
        a("ds_read_b64 %s, v6 offset:%d" % (vr(f, 2), 512 * n + 64 * ee))
        a("ds_read_b64 %s, v6 offset:%d" % (vr(f + 2, 2), 512 * n + 64 * ee + 8))
        a("ds_read_b128 %s, v%d offset:%d" % (vr(f + 4, 4), BA + ee, 2048 * (7 - n)))
    order = []
    for n in range(8):
        grp = []
        for o in range(n):
            if n + o <= 7: grp += [(n, o), (o, n)]
        if 2 * n <= 7: grp.append((n, n))
        order.append(grp)
    for gi in range(4): rd(gi)
    touched = set()
    for gi in range(32):
        ee, n = divmod(gi, 8)
        a("s_waitcnt lgkmcnt(%d)" % (3 * min(3, 31 - gi)))
        first = True
        for (i, m) in order[n]:
            t = i + m
            c = vr(ACC + 4 * t, 4) if t in touched else "0"
            touched.add(t)
            a("v_mfma_f32_16x16x32_bf16 %s, %s, %s, %s" % (vr(ACC + 4 * t, 4), vr(fr(8 * ee + i), 4), vr(fr(8 * ee + m) + 4, 4), c))
            if first and gi + 4 < 32: rd(gi + 4)
            first = False
    stamp(a, 4)
    a("s_lshl_b32 s20, s16, 12\ns_add_u32 s20, s20, %d\nv_lshlrev_b32 v12, 4, v1\nv_add_u32 v13, s20, v12" % K2_RED)
    a("s_xor_b32 s20, s16, 4\ns_lshl_b32 s20, s20, 12\ns_add_u32 s20, s20, %d\nv_add_u32 v14, s20, v12" % K2_RED)
    a("s_nop 3")
    a("s_cmp_eq_u32 s18, 0\ns_cbranch_scc0 K2_SEND_LO")
    for tt in range(4): a("ds_write_b128 v13, %s offset:%d" % (vr(ACC + 16 + 4 * tt, 4), 1024 * tt))
    a("s_branch K2_SENT")
    a("K2_SEND_LO:")
    for tt in range(4): a("ds_write_b128 v13, %s offset:%d" % (vr(ACC + 4 * tt, 4), 1024 * tt))
    a("s_nop 1")
    for i in range(16): a("v_mov_b32 v%d, v%d" % (ACC + i, ACC + 16 + i))
    a("K2_SENT:")
    a("s_lshl_b32 s20, s16, 2\ns_add_u32 s20, s20, %d\nv_mov_b32 v12, s20\nv_mov_b32 v13, 1\ns_waitcnt lgkmcnt(0)\nds_write_b32 v12, v13" % K2_FL)
    a("v_xor_b32 v15, 16, v12\nv_mov_b32 v13, %d" % (K2_FL + 32))
    a("v_lshlrev_b32 v12, 1, v2\nv_add_u32 v12, v12, v5")
    a("s_lshl_b32 s20, s18, 7\ns_sub_u32 s20, 159, s20\nv_sub_u32 v7, s20, v12")
    a("v_lshrrev_b32 v8, 2, v7\nv_and_b32 v8, 3, v8\nv_xor_b32 v8, s17, v8\nv_lshlrev_b32 v8, 4, v8")
    a("v_lshlrev_b32 v7, 6, v7\nv_xor_b32 v9, 1, v4\nv_lshlrev_b32 v9, 3, v9\nv_add3_u32 v7, v7, v8, v9\nv_add_u32 v7, %d, v7" % K2_U)
    U_, O, X_, S_ = 64, 48, 72, 80
    for tt in range(4): a("ds_read_b64 %s, v7 offset:%d" % (vr(U_ + 2 * tt, 2), 2048 * (3 - tt)))
    a("s_lshl_b32 s20, s18, 7\nv_add_u32 v8, s20, v12")
    a("v_lshrrev_b32 v9, 2, v8\nv_and_b32 v9, 3, v9\nv_xor_b32 v9, s17, v9\nv_lshlrev_b32 v9, 4, v9")
    a("v_lshlrev_b32 v8, 6, v8\nv_lshlrev_b32 v10, 3, v4\nv_add3_u32 v8, v8, v9, v10\nv_add_u32 v8, %d, v8" % K2_X)
    a("v_lshlrev_b32 v9, 4, v2\nv_lshlrev_b32 v10, 2, v3\ns_lshl_b32 s20, s18, 10\nv_add3_u32 v9, v9, v10, s20")
    a("v_lshlrev_b32 v10, 2, v9\nv_add_u32 v10, %d, v10" % K2_ST)
    a("s_and_b32 s20, s19, 7\nv_and_b32 v9, 7, v2\nv_xor_b32 v9, s20, v9\nv_lshlrev_b32 v9, 5, v9\nv_lshl_add_u32 v9, v3, 3, v9")
    a("v_lshrrev_b32 v11, 3, v2\nv_lshl_add_u32 v9, v11, 18, v9")
    a("s_lshl_b32 s20, s19, 8\ns_lshl_b32 s34, s18, 21\ns_add_u32 s34, s34, s20\ns_add_u32 s34, s34, 0x%x" % HT)
    a("s_lshl_b32 s20, s21, 16\ns_and_b32 s21, s21, 0xffff0000\ns_bitcmp0_b32 s15, 0\ns_cselect_b32 s21, s20, s21")
    a("s_mov_b32 s33, 0xffff0000")
    a("s_waitcnt lgkmcnt(0)")
    W = 96
    for tt in range(4):
        uf = W + 16 * tt; y = ACC + 4 * tt
        a("v_and_b32 v%d, s33, v%d\nv_lshlrev_b32 v%d, 16, v%d" % (uf + 0, U_ + 2 * tt + 1, uf + 1, U_ + 2 * tt + 1))
        a("v_and_b32 v%d, s33, v%d\nv_lshlrev_b32 v%d, 16, v%d" % (uf + 2, U_ + 2 * tt, uf + 3, U_ + 2 * tt))
        for r in range(4): a("v_fma_f32 v%d, v%d, s21, v%d" % (y + r, uf + r, y + r))
    a("K2_POLL:")
    a("ds_read_b32 v72, v15\nds_read_b128 v[76:79], v13\ns_waitcnt lgkmcnt(0)")
    a("v_and_b32 v72, v72, v76\nv_and_b32 v77, v77, v78\nv_and_b32 v72, v72, v79\nv_and_b32 v72, v72, v77\ns_nop 0\nv_readfirstlane_b32 s20, v72")
    a("s_nop 0\ns_cmp_eq_u32 s20, 1\ns_cbranch_scc1 K2_GO\ns_sleep 1\ns_branch K2_POLL")
    a("K2_GO:")
    stamp(a, 5)
    if STAMP: a("s_waitcnt lgkmcnt(0)")
    for tt in range(4):
        a("ds_read_b128 %s, v10 offset:%d" % (vr(S_ + 4 * tt, 4), 1024 * tt))
        a("ds_read_b64 %s, v8 offset:%d" % (vr(X_ + 2 * tt, 2), 2048 * tt))
        a("ds_read_b128 %s, v14 offset:%d" % (vr(O + 4 * tt, 4), 1024 * tt))
    for tt in range(4):
        a("s_waitcnt lgkmcnt(%d)" % (3 * (3 - tt)))
        y = ACC + 4 * tt; w = W + 16 * tt
        xf, mf, rf = w + 4, w + 8, w + 12
        for r in range(4): a("v_and_b32 v%d, s33, v%d" % (rf + r, S_ + 4 * tt + r))
        for r in range(4): a("v_rcp_f32 v%d, v%d" % (rf + r, rf + r))
        for r in range(4): a("v_add_f32 v%d, v%d, v%d" % (y + r, y + r, O + 4 * tt + r))
        a("v_lshlrev_b32 v%d, 16, v%d\nv_and_b32 v%d, s33, v%d" % (xf + 0, X_ + 2 * tt, xf + 1, X_ + 2 * tt))
        a("v_lshlrev_b32 v%d, 16, v%d\nv_and_b32 v%d, s33, v%d" % (xf + 2, X_ + 2 * tt + 1, xf + 3, X_ + 2 * tt + 1))
        for r in range(4): a("v_lshlrev_b32 v%d, 16, v%d" % (mf + r, S_ + 4 * tt + r))
        for r in range(4): a("v_sub_f32 v%d, v%d, v%d" % (mf + r, xf + r, mf + r))
        for r in range(4): a("v_mul_f32 v%d, v%d, v%d" % (mf + r, mf + r, rf + r))
        for r in range(4): a("v_fma_f32 v%d, v%d, v%d, v%d" % (y + r, mf + r, y + r, xf + r))
        a("v_cvt_pk_bf16_f32 v%d, v%d, v%d\nv_cvt_pk_bf16_f32 v%d, v%d, v%d" % (w, y, y + 1, w + 1, y + 2, y + 3))
        a("buffer_store_dwordx2 %s, v9, s[28:31], s34 offen%s\ns_add_u32 s34, s34, 0x80000" % (vr(w, 2), sflag("k2")))
    stamp(a, 6)
    if STAMP: a("s_waitcnt vmcnt(0)")
    stamp(a, 7)
    stamp_store(a, 1, 16, 12, 12)
    a("K2_END:\ns_endpgm")

if __name__ == "__main__":
    STAMP = "s_memrealtime" if "--stamp" in sys.argv else ("s_memtime" if "--stampc" in sys.argv else False)
    a = Asm()
    gen_k1(a)
    gen_k2(a, prefetch="--nopf" not in sys.argv)
    sys.stdout.write(a.text())
```

```python
from gen import *
import gen

LOG2E = 1.4426950408889634

K3_SUB = 22528; K3_STG = 2 * K3_SUB; K3_R = 3
K3_TAB = K3_STG * K3_R
K3_CS = K3_TAB + 1024
K3_LDS = K3_CS + 896
K3_NST = 16

def lane_parts(a):
    a("v_and_b32 v1, 63, v0\nv_lshrrev_b32 v2, 4, v1\nv_bfe_u32 v3, v1, 2, 2\nv_and_b32 v4, 3, v1\nv_and_b32 v5, 1, v2")

def gen_k3(a):
    a.begin("k3_kernel", 256, 512, K3_LDS, vgpr=216, sgpr=96)
    a("s_cmp_ge_u32 s2, 256\ns_cbranch_scc1 K3_END")
    for i in range(8): stamp(a, i)
    a("s_load_dwordx4 s[4:7], s[0:1], 56\ns_load_dwordx2 s[12:13], s[0:1], 88")
    a("s_and_b32 s8, s2, 7\ns_lshr_b32 s9, s2, 3")
    if "mapB" in OPT:
        a("s_lshr_b32 s14, s8, 1\ns_lshl_b32 s14, s14, 2\ns_lshr_b32 s15, s9, 3\ns_add_u32 s14, s14, s15")
        a("s_and_b32 s15, s8, 1\ns_lshl_b32 s15, s15, 3\ns_and_b32 s9, s9, 7\ns_add_u32 s15, s15, s9")
    else:
        a("s_and_b32 s14, s8, 1\ns_lshl_b32 s14, s14, 3\ns_lshr_b32 s15, s9, 2\ns_add_u32 s14, s14, s15")
        a("s_lshr_b32 s15, s8, 1\ns_lshl_b32 s15, s15, 2\ns_and_b32 s9, s9, 3\ns_add_u32 s15, s15, s9")
    a("v_lshrrev_b32 v6, 6, v0")
    lane_parts(a)
    a("v_readfirstlane_b32 s16, v6")
    a("s_mov_b32 s30, %d\ns_mov_b32 s31, %d" % (K3_STG, -(K3_R - 1) * K3_STG & 0xffffffff))
    a("s_cmp_lt_u32 s16, 4\ns_cbranch_scc1 K3_CONS")
    if "e3" in OPT: a("s_endpgm")
    a("s_sub_u32 s17, s16, 4\ns_and_b32 s18, s17, 1")
    a("v_lshlrev_b32 v8, 4, v1")
    a("s_and_b32 s52, s15, 12\ns_and_b32 s53, s15, 3")
    a("s_mul_i32 s27, s18, %d" % K3_SUB)
    a("s_waitcnt lgkmcnt(0)")
    a.srd(44, 12, WS_BYTES)
    def mkstage(n, step):
        cnt = [0]
        def stage():
            a("s_mul_i32 s24, s52, %d\ns_add_u32 s24, s24, s26\ns_mov_b32 m0, s28" % (0 if "e2" in OPT else step))
            cnt[0] += 1
            for i in range(n if not ("e1" in OPT and cnt[0] > 2) else 0):
                if i and i % 4 == 0: a("s_add_u32 m0, m0, 4096\ns_add_u32 s24, s24, 4096")
                if i == 0: a("s_add_u32 s52, s52, 1")
                a("buffer_load_dwordx4 v8, s[44:47], s24 offen offset:%d lds" % (1024 * (i % 4)))
            a("s_and_b32 s52, s52, 15")
            a("s_add_u32 s28, s28, %d\ns_cmp_ge_u32 s28, s29\ns_cselect_b32 s28, s27, s28" % K3_STG)
        return stage
    a("s_cmp_lt_u32 s17, 2\ns_cbranch_scc1 K3_XL")
    a("s_add_u32 s27, s27, 8192\ns_mov_b32 s28, s27\ns_add_u32 s29, s27, %d" % (K3_R * K3_STG))
    if "w1p" in OPT:
        a("s_mul_i32 s26, s15, %d\ns_mul_i32 s21, s18, 14336\ns_add_u32 s26, s26, s21\ns_add_u32 s26, s26, 0x%x" % (1024 * 448, W1P))
        stage = mkstage(14, 28672)
    else:
        a.srd(40, 4, 7340032)
        a("s_mul_i32 s20, s15, 448\ns_mul_i32 s21, s18, %d\ns_add_u32 s20, s20, s21\ns_mov_b32 s22, 0x924924a" % (32 * 7168))
        def wpiece(v, pi):
            a("v_add_u32 v6, %d, v1\nv_mul_hi_u32 v7, v6, s22" % (64 * pi))
            a("v_mul_u32_u24 v9, 28, v7\nv_sub_u32 v6, v6, v9")
            a("v_lshrrev_b32 v9, 1, v7\nv_and_b32 v9, 2, v9\nv_xor_b32 v6, v6, v9\nv_lshlrev_b32 v6, 4, v6")
            a("v_mul_u32_u24 v7, 7168, v7\nv_add3_u32 v%d, v7, v6, s20" % v)
        first = [True]
        def stage():
            a("s_mul_i32 s24, s52, %d\ns_mov_b32 m0, s28\ns_add_u32 s52, s52, 1" % (64 * 7168))
            for i in range(14):
                if first[0]: wpiece(10 + i, i)
                if i: a("s_add_u32 m0, m0, 1024\ns_nop 0")
                a("buffer_load_dwordx4 v%d, s[40:43], s24 offen lds" % (10 + i))
            first[0] = False
            a("s_and_b32 s52, s52, 15")
            a("s_add_u32 s28, s28, %d\ns_cmp_ge_u32 s28, s29\ns_cselect_b32 s28, s27, s28" % K3_STG)
    stage(); stage()
    a("s_mov_b32 s32, 0")
    stamp(a, 1)
    if "blog" in OPT: a("v_mov_b32 v30, 0\nv_mov_b32 v32, 0")
    a("K3_WLOOP:")
    if "blog" in OPT:
        a("s_waitcnt vmcnt(14)\ns_memtime s[60:61]\ns_waitcnt lgkmcnt(0)\ns_sub_u32 s60, s60, s70\nv_mov_b32 v31, s60\nv_cmp_eq_u32 vcc, s32, v1\ns_nop 1\nv_cndmask_b32 v32, v32, v31, vcc")
    a("s_waitcnt vmcnt(14)\ns_barrier")
    if "blog" in OPT:
        a("s_memtime s[60:61]\ns_waitcnt lgkmcnt(0)\ns_sub_u32 s60, s60, s70\nv_mov_b32 v31, s60\nv_cmp_eq_u32 vcc, s32, v1\ns_nop 1\nv_cndmask_b32 v30, v30, v31, vcc")
    stage()
    a("s_add_u32 s32, s32, 1\ns_cmp_lt_u32 s32, %d\ns_cbranch_scc1 K3_WLOOP" % (K3_NST - 2))
    if "blog" in OPT:
        a("s_lshl_b32 s60, s2, 9\ns_add_u32 s60, s60, 0x%x\nv_lshlrev_b32 v31, 2, v1\nv_add_u32 v31, s60, v31" % (STB + 0x800000))
        a("global_store_dword v31, v30, s[12:13]\nglobal_store_dword v31, v32, s[12:13] offset:256\ns_waitcnt vmcnt(0)")
    a("s_waitcnt vmcnt(14)\ns_barrier\ns_branch K3_LTAIL")
    a("K3_XL:")
    a("s_lshl_b32 s26, s14, 18\ns_lshl_b32 s21, s18, 13\ns_add_u32 s26, s26, s21\ns_add_u32 s26, s26, 0x%x" % HT)
    a("s_mov_b32 s28, s27\ns_add_u32 s29, s27, %d" % (K3_R * K3_STG))
    stage = mkstage(8, 16384)
    stage(); stage()
    a("v_lshrrev_b32 v20, 2, v1\nv_and_b32 v21, 7, v20\nv_lshlrev_b32 v21, 1, v21\ns_lshl_b32 s21, s17, 3\nv_add_u32 v22, s21, v4\nv_xor_b32 v21, v21, v22")
    a("v_lshlrev_b32 v21, 4, v21\nv_lshl_add_u32 v20, v20, 8, v21")
    a("s_cmp_eq_u32 s53, 3\ns_cselect_b32 s22, 0, s53\ns_mul_i32 s22, s22, %d\nv_add_u32 v20, s22, v20\nv_xor_b32 v19, 64, v20" % K3_STG)
    a("s_lshl_b32 s21, s14, 2\ns_lshl_b32 s22, s17, 1\ns_add_u32 s21, s21, s22\ns_lshl_b32 s21, s21, 4\ns_add_u32 s21, s21, s15\ns_lshl_b32 s21, s21, 8\ns_add_u32 s21, s21, 0x%x" % XSP)
    a("v_lshlrev_b32 v21, 6, v2\nv_lshlrev_b32 v22, 4, v4\nv_add3_u32 v21, v21, v22, s21\nv_add_u32 v18, 4096, v21")
    a("s_lshl_b32 s21, s14, 8\ns_add_u32 s21, s21, 0x%x\nv_mov_b32 v22, s21\nv_mov_b32 v23, 1\ns_mov_b32 s33, 0xffff0000" % CNT)
    NPIECE = 7
    a("s_add_u32 s54, s53, %d" % (NPIECE + 1))
    a("s_cmp_eq_u32 s17, 0\ns_cselect_b32 s54, s54, 99")
    a("s_mov_b32 s32, 0")
    stamp(a, 1)
    a("K3_LLOOP:")
    a("s_waitcnt vmcnt(8)\ns_barrier")
    a("s_cmp_eq_u32 s32, s54\ns_cbranch_scc0 K3_NOSIG\ns_mov_b64 exec, 1")
    a("buffer_atomic_add v23, v22, s[44:47], 0 offen\ns_mov_b64 exec, -1")
    a("K3_NOSIG:")
    stage()
    pieces = []
    b = Asm()
    for p in range(2):
        for i in range(4):
            b("ds_read_b128 %s, v%d offset:%d" % (vr(24 + 16 * p + 4 * i, 4), 20 - p, (i >> 1) * K3_SUB + (i & 1) * 4096))
    b("s_waitcnt lgkmcnt(0)")
    pieces.append(b)
    for p in range(2):
        R = 64 + 16 * p; U = 56
        for i in range(4):
            if i % 2 == 0:
                b = Asm(); pieces.append(b)
            dst = R if i == 0 else U
            for d in range(4):
                b("v_lshlrev_b32 v%d, 16, v%d\nv_and_b32 v%d, s33, v%d" % (dst + 2 * d, 24 + 16 * p + 4 * i + d, dst + 2 * d + 1, 24 + 16 * p + 4 * i + d))
            for d in range(4):
                if i == 0: b("v_pk_mul_f32 %s, %s, %s" % (vr(R + 8 + 2 * d, 2), vr(R + 2 * d, 2), vr(R + 2 * d, 2)))
                else:
                    b("v_pk_add_f32 %s, %s, %s" % (vr(R + 2 * d, 2), vr(R + 2 * d, 2), vr(U + 2 * d, 2)))
                    b("v_pk_fma_f32 %s, %s, %s, %s" % (vr(R + 8 + 2 * d, 2), vr(U + 2 * d, 2), vr(U + 2 * d, 2), vr(R + 8 + 2 * d, 2)))
    b = Asm(); pieces.append(b)
    for p in range(2):
        R = 64 + 16 * p
        for i in range(8): b("v_permlane32_swap_b32 v%d, v%d" % (R + i, R + 8 + i))
        for i in range(8): b("v_add_f32 v%d, v%d, v%d" % (R + i, R + i, R + 8 + i))
    b = Asm(); pieces.append(b)
    for p in range(2):
        R = 64 + 16 * p
        for i in range(4): b("v_permlane16_swap_b32 v%d, v%d" % (R + i, R + 4 + i))
        for i in range(4): b("v_add_f32 v%d, v%d, v%d" % (R + i, R + i, R + 4 + i))
    for sh in (8, 4):
        for p in range(2):
            R = 64 + 16 * p
            for i in range(4):
                b("v_add_f32_dpp v%d, v%d, v%d row_ror:%d row_mask:0xf bank_mask:0xf" % (R + i, R + i, R + i, sh))
    b("s_mov_b32 exec_lo, 0x000f000f\ns_mov_b32 exec_hi, 0x000f000f")
    b("buffer_store_dwordx4 v[64:67], v21, s[44:47], 0 offen sc1\nbuffer_store_dwordx4 v[80:83], v18, s[44:47], 0 offen sc1")
    b("s_mov_b64 exec, -1")
    assert len(pieces) == NPIECE
    a("s_sub_u32 s55, s32, s53\ns_cmp_lt_u32 s55, %d\ns_cbranch_scc0 K3_NOST" % NPIECE)
    for k, b in enumerate(pieces):
        a("K3_ST%d:" % k)
        if k + 1 < NPIECE: a("s_cmp_eq_u32 s55, %d\ns_cbranch_scc0 K3_ST%d" % (k, k + 1))
        a.lines += b.lines
        if k + 1 < NPIECE: a("s_branch K3_NOST")
    a("K3_NOST:")
    a("s_add_u32 s32, s32, 1\ns_cmp_lt_u32 s32, %d\ns_cbranch_scc1 K3_LLOOP" % (K3_NST - 2))
    a("s_waitcnt vmcnt(8)\ns_barrier")
    a("K3_LTAIL:")
    a("s_lshl_b32 s21, s14, 8\ns_add_u32 s21, s21, 0x%x\nv_mov_b32 v7, s21\ns_mov_b32 s23, 0" % CNT)
    a("K3_POLL:")
    a("buffer_load_dword v21, v7, s[44:47], 0 offen sc1\ns_waitcnt vmcnt(0)")
    a("v_readfirstlane_b32 s21, v21\ns_nop 0\ns_cmp_ge_u32 s21, 16\ns_cbranch_scc1 K3_GOT\ns_sleep 1\ns_add_u32 s23, s23, 1\ns_cmp_lt_u32 s23, 0x400000\ns_cbranch_scc1 K3_POLL")
    a("K3_GOT:")
    a("s_lshl_b32 s21, s14, 2\ns_add_u32 s21, s21, s17\ns_lshl_b32 s21, s21, 12\ns_add_u32 s21, s21, 0x%x\nv_lshlrev_b32 v6, 2, v1" % XSP)
    for p in range(16):
        a("buffer_load_dword v%d, v6, s[44:47], s21 offen offset:%d sc1" % (40 + p, 256 * p))
    a("s_mul_i32 s21, s15, 896\ns_mul_i32 s22, s17, 224\ns_add_u32 s21, s21, s22\ns_add_u32 s21, s21, 0x%x" % CSP)
    for p in range(16):
        a("buffer_load_dword v%d, v6, s[44:47], s21 offen\ns_add_u32 s21, s21, 14336" % (24 + p))
    a("s_barrier")
    NPF = 0
    a("s_lshl_b32 s22, s2, 8\ns_add_u32 s22, s22, 0x%x\nv_mov_b32 v7, 0\nv_mov_b32 v21, s22" % FLG)
    a("s_mul_i32 s22, s17, 224\ns_add_u32 s22, s22, %d\nv_add_u32 v6, s22, v6" % K3_CS)
    a("v_lshlrev_b32 v22, 3, v3\nv_add_u32 v22, v22, v4\nv_lshlrev_b32 v23, 2, v5\nv_add_u32 v22, v22, v23\nv_lshlrev_b32 v22, 3, v22")
    a("s_lshl_b32 s22, s17, 8\ns_add_u32 s22, s22, %d\nv_add_u32 v22, s22, v22" % K3_TAB)
    a("s_waitcnt vmcnt(%d)" % (16 + NPF))
    for st in (8, 4, 2, 1):
        for p in range(st): a("v_add_f32 v%d, v%d, v%d" % (40 + p, 40 + p, 40 + st + p))
    a("v_mov_b32 v41, v40\ns_nop 1\nv_permlane32_swap_b32 v40, v41")
    stats_finish(a, 40, 41, 42, 43, 1024)
    a("v_and_b32 v45, 0xffff0000, v40\nv_rcp_f32 v45, v45\nv_lshlrev_b32 v44, 16, v40\nv_xor_b32 v44, 0x80000000, v44")
    a("ds_write_b64 v22, v[44:45]")
    a("s_waitcnt vmcnt(%d)" % NPF)
    for st in (8, 4, 2, 1):
        for p in range(st): a("v_add_f32 v%d, v%d, v%d" % (24 + p, 24 + p, 24 + st + p))
    a("s_mov_b32 exec_hi, 0x00ffffff")
    a("ds_write_b32 v6, v24")
    a("s_cmp_eq_u32 s17, 0\ns_cbranch_scc0 K3_NOFLAG\ns_mov_b64 exec, 1")
    a("buffer_store_dword v7, v21, s[44:47], 0 offen")
    a("K3_NOFLAG:")
    a("s_mov_b64 exec, -1")
    stamp(a, 2)
    a("s_waitcnt lgkmcnt(0)\ns_barrier")
    stamp(a, 3)
    stamp_store(a, 2, 16, 8, 12)
    a("s_endpgm")
    a("K3_CONS:")
    a("s_setprio 2")
    a("s_and_b32 s17, s16, 1\ns_lshr_b32 s18, s16, 1")
    XA, WA, WB, WC = 8, 12, 13, 14
    a("v_lshlrev_b32 v6, 2, v2\nv_add_u32 v6, v6, v3\nv_and_b32 v7, 7, v6\nv_lshlrev_b32 v15, 3, v4\nv_lshl_add_u32 v6, v6, 8, v15")
    a("s_lshl_b32 s21, s17, 2\nv_xor_b32 v7, s21, v7\nv_lshl_add_u32 v%d, v7, 5, v6" % XA)
    for i in range(1, 4): a("v_xor_b32 v%d, %d, v%d" % (XA + i, 32 * i, XA))
    a("v_lshlrev_b32 v7, 5, v5")
    a("v_lshlrev_b32 v6, 2, v2\nv_add_u32 v6, v6, v3\nv_mul_u32_u24 v6, 448, v6\nv_add_u32 v6, v6, v15\nv_add_u32 v6, 8192, v6")
    a("s_lshl_b32 s21, s18, 8\nv_add_u32 v15, s21, v6\nv_add_u32 v%d, v15, v7\nv_sub_u32 v%d, v15, v7" % (WA, WB))
    a("s_add_u32 s21, s18, 6\nv_xor_b32 v15, s21, v5\nv_lshlrev_b32 v15, 5, v15\nv_add_u32 v%d, v6, v15" % WC)
    FS = [16, 60]; ACC = 104
    def reads(st, sub):
        r = []
        f = FS[st]
        for i in range(4):
            for h in range(2):
                r.append("ds_read_b64_tr_b16 %s, v%d offset:%d" % (vr(f + 4 * i + 2 * h, 2), XA + i, sub * K3_SUB + h * 4096))
        for i in range(7):
            for h in range(2):
                if i < 6: r.append("ds_read_b64_tr_b16 %s, v%d offset:%d" % (vr(f + 16 + 4 * i + 2 * h, 2), WA + (i & 1), sub * K3_SUB + h * 7168 + 32 * i))
                else: r.append("ds_read_b64_tr_b16 %s, v%d offset:%d" % (vr(f + 16 + 4 * i + 2 * h, 2), WC, sub * K3_SUB + h * 7168))
        return r
    seq = [(i, s) for s in range(4) for i in range(7)] if "ordA" not in OPT else [(i, s) for i in range(7) for s in range(4)]
    def phase(st, fill, first=False):
        f = FS[st]; k = 0
        for m, (i, s) in enumerate(seq):
            d = vr(ACC + 16 * i + 4 * s, 4)
            a("v_mfma_f32_16x16x32_bf16 %s, %s, %s, %s" % (d, vr(f + 16 + 4 * i, 4), vr(f + 4 * s, 4), "0" if first else d))
            upto = min(len(fill), (m + 1) * (2 if "fast" in OPT else 1)) if m < 27 else len(fill)
            while k < upto: a(fill[k]); k += 1
        assert k == len(fill)
    adv = ["v_add_u32 v%d, s35, v%d" % (v, v) for v in range(XA, WC + 1)]
    def sadv():
        a("s_add_u32 s34, s34, 1\ns_cmp_eq_u32 s34, %d\ns_cselect_b32 s35, s31, s30\ns_cselect_b32 s34, 0, s34" % K3_R)
    a("s_mov_b32 s34, 0\ns_mov_b32 s32, 1")
    a("s_waitcnt lgkmcnt(0)\ns_barrier")
    stamp(a, 1)
    if gen.STAMP: a("s_waitcnt lgkmcnt(0)")
    for r in reads(0, 0): a(r)
    sadv()
    a("s_waitcnt lgkmcnt(0)")
    phase(0, reads(1, 1) + adv, first=True)
    a("s_waitcnt lgkmcnt(0)\ns_barrier")
    phase(1, reads(0, 0))
    a("K3_CLOOP:")
    sadv()
    a("s_waitcnt lgkmcnt(0)")
    phase(0, reads(1, 1) + adv)
    a("s_waitcnt lgkmcnt(0)" + ("" if "nobar" in OPT else "\ns_barrier"))
    phase(1, reads(0, 0))
    a("s_add_u32 s32, s32, 1\ns_cmp_lt_u32 s32, %d\ns_cbranch_scc1 K3_CLOOP" % (K3_NST - 1))
    a("s_waitcnt lgkmcnt(0)")
    phase(0, reads(1, 1))
    a("s_waitcnt lgkmcnt(0)")
    phase(1, [])
    stamp(a, 2)
    a("s_add_u32 s8, s12, 0x%x\ns_addc_u32 s9, s13, 0" % H1)
    a.srd(36, 8, H1_BYTES)
    a("v_and_b32 v6, 15, v1\nv_lshlrev_b32 v6, 3, v6\ns_lshl_b32 s21, s17, 9\ns_add_u32 s21, s21, %d\nv_add_u32 v6, s21, v6" % K3_TAB)
    a("v_lshlrev_b32 v7, 4, v2\ns_lshl_b32 s21, s18, 9\ns_add_u32 s21, s21, %d\nv_add_u32 v8, s21, v7" % K3_CS)
    a("s_lshl_b32 s21, s18, 6\ns_add_u32 s21, s21, %d\nv_add_u32 v9, s21, v7" % (K3_CS + 384))
    a("s_mul_i32 s21, s14, 112\ns_mul_i32 s22, s15, 7\ns_add_u32 s21, s21, s22\ns_lshl_b32 s21, s21, 13\ns_lshl_b32 s22, s17, 12\ns_add_u32 s21, s21, s22")
    a("s_lshl_b32 s22, s18, 15\ns_add_u32 s22, s22, s21\nv_lshlrev_b32 v10, 4, v1\nv_add_u32 v11, s22, v10")
    a("s_lshl_b32 s22, s18, 3\ns_add_u32 s22, s22, s21\ns_add_u32 s22, s22, %d\nv_add_u32 v13, s22, v10" % (3 * 8192))
    a("s_mov_b32 s24, 0x%x\ns_mov_b32 s25, s24\ns_mov_b32 s26, 1.0\ns_mov_b32 s27, 1.0" % f32bits(-LOG2E))
    a("s_mov_b32 s28, 8192\ns_mov_b32 s29, 16384")
    a("s_waitcnt lgkmcnt(0)\ns_barrier")
    stamp(a, 3)
    RT = 16; CSR = 24
    for s in range(4): a("ds_read_b64 %s, v6 offset:%d" % (vr(RT + 2 * s, 2), 128 * s))
    for i in range(6): a("ds_read_b128 %s, v8 offset:%d" % (vr(CSR + 4 * i, 4), 64 * i))
    a("ds_read_b128 %s, v9" % vr(CSR + 24, 4))
    a("s_waitcnt lgkmcnt(0)")
    T = 56; PK = 72
    def silu2(tiles):
        zs = [(ACC + 16 * i + 4 * s, vr(RT + 2 * s, 2), CSR + 4 * i, T + 4 * n, dst) for n, (i, s, dst) in enumerate(tiles)]
        for z, rt, cs, t, dst in zs:
            for p in range(2): a("v_pk_fma_f32 %s, %s, %s, %s op_sel_hi:[1,0,1]" % (vr(z + 2 * p, 2), vr(cs + 2 * p, 2), rt, vr(z + 2 * p, 2)))
        for z, rt, cs, t, dst in zs:
            for p in range(2): a("v_pk_mul_f32 %s, %s, %s op_sel:[0,1] op_sel_hi:[1,1]" % (vr(z + 2 * p, 2), vr(z + 2 * p, 2), rt))
        for z, rt, cs, t, dst in zs:
            for p in range(2): a("v_pk_mul_f32 %s, %s, s[24:25]" % (vr(t + 2 * p, 2), vr(z + 2 * p, 2)))
        for z, rt, cs, t, dst in zs:
            for r in range(4): a("v_exp_f32 v%d, v%d" % (t + r, t + r))
        for z, rt, cs, t, dst in zs:
            for p in range(2): a("v_pk_add_f32 %s, %s, s[26:27]" % (vr(t + 2 * p, 2), vr(t + 2 * p, 2)))
        for z, rt, cs, t, dst in zs:
            for r in range(4): a("v_rcp_f32 v%d, v%d" % (t + r, t + r))
        for z, rt, cs, t, dst in zs:
            for p in range(2): a("v_pk_mul_f32 %s, %s, %s" % (vr(z + 2 * p, 2), vr(z + 2 * p, 2), vr(t + 2 * p, 2)))
        for z, rt, cs, t, dst in zs:
            a("v_cvt_pk_bf16_f32 v%d, v%d, v%d\nv_cvt_pk_bf16_f32 v%d, v%d, v%d" % (dst, z, z + 1, dst + 1, z + 2, z + 3))
    n = 0
    for pr in range(3):
        for s in range(4):
            d = PK + 4 * (n % 8); n += 1
            silu2([(2 * pr, s, d), (2 * pr + 1, s, d + 2)])
            a("buffer_store_dwordx4 %s, v%d, s[36:39], %s offen offset:%d%s" % (vr(d, 4), 11, ["0", "s28", "s29"][pr], 1024 * s, sflag("k3")))
    for s in (0, 2):
        d = PK + 4 * (n % 8); n += 1
        silu2([(6, s, d), (6, s + 1, d + 2)])
        a("buffer_store_dwordx2 %s, v13, s[36:39], 0 offen offset:%d%s" % (vr(d, 2), 1024 * s, sflag("k3")))
        a("buffer_store_dwordx2 %s, v13, s[36:39], 0 offen offset:%d%s" % (vr(d + 2, 2), 1024 * s + 1024, sflag("k3")))
    stamp(a, 4)
    if gen.STAMP: a("s_waitcnt vmcnt(0)")
    stamp(a, 5)
    stamp_store(a, 2, 16, 8, 12)
    a("K3_END:\ns_endpgm")

K4_SUB = 16384; K4_STG = 32768; K4_R = 4
K4_RES = K4_STG * K4_R
K4_LDS = K4_RES + 16384
K4_NST = 28

def gen_k4(a):
    a.begin("k4_kernel", 256, 512, K4_LDS, vgpr=192, sgpr=96)
    a("s_cmp_ge_u32 s2, 256\ns_cbranch_scc1 K4_END")
    for i in range(8): stamp(a, i)
    a("s_load_dwordx4 s[4:7], s[0:1], 64\ns_load_dwordx2 s[12:13], s[0:1], 88")
    a("s_and_b32 s8, s2, 7\ns_lshr_b32 s9, s2, 3")
    a("s_and_b32 s19, s8, 1")
    a("s_lshr_b32 s14, s8, 1\ns_lshl_b32 s14, s14, 2\ns_and_b32 s15, s9, 3\ns_add_u32 s14, s14, s15")
    a("s_lshr_b32 s15, s9, 2")
    a("v_lshrrev_b32 v6, 6, v0")
    lane_parts(a)
    a("v_readfirstlane_b32 s16, v6")
    a("s_mov_b32 s30, %d\ns_mov_b32 s31, %d" % (K4_STG, -(K4_R - 1) * K4_STG & 0xffffffff))
    a("s_cmp_lt_u32 s16, 4\ns_cbranch_scc1 K4_CONS")
    if "k4e3" in OPT: a("s_endpgm")
    a("s_sub_u32 s17, s16, 4\ns_lshr_b32 s18, s17, 1\ns_and_b32 s20, s17, 1")
    a("v_lshlrev_b32 v8, 4, v1")
    a("s_mul_i32 s21, s14, 112\ns_mul_i32 s22, s19, 56\ns_add_u32 s22, s22, s18\ns_add_u32 s21, s21, s22\ns_lshl_b32 s21, s21, 13\ns_add_u32 s21, s21, 0x%x" % H1)
    a("s_mul_i32 s23, s15, 112\ns_add_u32 s23, s23, s22\ns_lshl_b32 s23, s23, 13\ns_add_u32 s23, s23, 0x%x" % W2P)
    a("s_cmp_eq_u32 s20, 0\ns_cselect_b32 s24, s21, s23")
    a("s_lshl_b32 s21, s15, 7\ns_lshl_b32 s22, s19, 6\ns_add_u32 s21, s21, s22\ns_lshl_b32 s22, s17, 4\ns_add_u32 s21, s21, s22\ns_lshl_b32 s21, s21, 8")
    a("s_lshl_b32 s22, s14, 18\ns_add_u32 s21, s21, s22\ns_add_u32 s25, s21, 0x%x" % HT)
    a("s_lshl_b32 s27, s17, 13\ns_mov_b32 s28, s27\ns_add_u32 s29, s27, %d" % (K4_R * K4_STG))
    a("s_waitcnt lgkmcnt(0)")
    a.srd(36, 12, WS_BYTES)
    TOUCH = "touch" in OPT
    TD = 3
    if TOUCH:
        a("s_mul_i32 s40, s17, 12\nv_add_u32 v9, s40, v1\nv_lshlrev_b32 v10, 7, v9")
        a("s_mul_i32 s40, s14, 112\ns_mul_i32 s41, s19, 56\ns_add_u32 s40, s40, s41\ns_lshl_b32 s40, s40, 13\ns_lshl_b32 s42, s15, 11\ns_add_u32 s40, s40, s42\ns_add_u32 s40, s40, 0x%x" % H1)
        a("s_mul_i32 s42, s15, 112\ns_add_u32 s42, s42, s41\ns_lshl_b32 s42, s42, 13\ns_and_b32 s43, s14, 3\ns_lshl_b32 s43, s43, 12\ns_add_u32 s42, s42, s43\ns_add_u32 s42, s42, 0x%x" % (W2P - 2048))
        a("v_add_u32 v11, s40, v10\nv_add_u32 v10, s42, v10\nv_cmp_gt_u32 vcc, 16, v9\ns_nop 1\nv_cndmask_b32 v10, v10, v11, vcc")
        a("s_mov_b32 s44, %d\ns_mov_b32 s45, %d" % (16384 * TD, 16384 * (K4_NST - 1)))
    def stage():
        a("s_mov_b32 m0, s28\ns_add_u32 s28, s28, %d" % K4_STG)
        for i in range(8):
            if i == 4: a("s_add_u32 m0, m0, 4096\ns_add_u32 s24, s24, 4096")
            a("buffer_load_dwordx4 v8, s[36:39], s24 offen offset:%d lds" % (1024 * (i % 4)))
        a("s_add_u32 s24, s24, %d" % (12288 if "k4e2" not in OPT else -4096 & 0xffffffff))
        a("s_cmp_ge_u32 s28, s29\ns_cselect_b32 s28, s27, s28")
        if TOUCH:
            a("s_mov_b64 exec, 0xfff\nbuffer_load_dword v12, v10, s[36:39], s44 offen\ns_mov_b64 exec, -1\ns_add_u32 s44, s44, 16384\ns_min_u32 s44, s44, s45")
    NP = 9 if TOUCH else 8
    X1 = NP - 8
    stage()
    stage()
    stamp(a, 1)
    a("s_waitcnt vmcnt(%d)\ns_barrier" % (NP + X1))
    stage()
    a("s_waitcnt vmcnt(%d)\ns_barrier" % (NP + X1))
    a("s_lshl_b32 s21, s17, 12\ns_add_u32 m0, s21, %d\ns_nop 0" % K4_RES)
    for i in range(4): a("buffer_load_dwordx4 v8, s[36:39], s25 offen offset:%d lds" % (1024 * i))
    stage()
    LA = K4_R - 1
    a("s_waitcnt vmcnt(%d)\ns_barrier" % (NP + X1 + 4))
    stage()
    if LA == 3: stage()
    a("s_mov_b32 s32, 3")
    a("K4_LLOOP:")
    a("s_waitcnt vmcnt(%d)\ns_barrier" % (NP * (LA - 1) + X1))
    stage()
    a("s_add_u32 s32, s32, 1\ns_cmp_lt_u32 s32, %d\ns_cbranch_scc1 K4_LLOOP" % (K4_NST - LA))
    for k in range(LA - 1, -1, -1):
        a("s_waitcnt vmcnt(%d)\ns_barrier" % (NP * k + X1))
    stamp(a, 2)
    stamp_store(a, 3, 16, 8, 12)
    a("s_endpgm")
    a("K4_CONS:")
    a("s_setprio 2")
    a("s_and_b32 s17, s16, 1\ns_lshr_b32 s18, s16, 1")
    HA, WK0, WK1, WS0, WS1 = 8, 9, 10, 11, 12
    a("v_lshlrev_b32 v%d, 4, v1\ns_lshl_b32 s21, s17, 12\nv_add_u32 v%d, s21, v%d" % (HA, HA, HA))
    a("v_lshlrev_b32 v6, 2, v2\nv_add_u32 v6, v6, v3\nv_and_b32 v7, 7, v6\nv_lshlrev_b32 v13, 3, v4\nv_lshl_add_u32 v6, v6, 8, v13\nv_lshl_add_u32 v14, v7, 5, v6")
    a("s_lshl_b32 s21, s18, 6\ns_lshl_b32 s22, s19, 7\ns_add_u32 s21, s21, s22\nv_xor_b32 v%d, s21, v14\nv_add_u32 v%d, 8192, v%d" % (WK0, WK0, WK0))
    a("v_xor_b32 v%d, 32, v%d\nv_xor_b32 v%d, 128, v%d\nv_xor_b32 v%d, 160, v%d" % (WK1, WK0, WS0, WK0, WS1, WK0))
    FS = [16, 48]; ACC = 80
    def reads(st, sub):
        r = []; f = FS[st]
        for i in range(4):
            r.append("ds_read_b128 %s, v%d offset:%d" % (vr(f + 4 * i, 4), HA, sub * K4_SUB + 1024 * i))
        for i in range(4):
            for h in range(2):
                r.append("ds_read_b64_tr_b16 %s, v%d offset:%d" % (vr(f + 16 + 4 * i + 2 * h, 2), WK0 + i, sub * K4_SUB + h * 4096))
        return r
    def phase(st, rds, first=False, extra=()):
        f = FS[st]; rds = list(rds); extra = list(extra); k = 0
        for i in range(4):
            for s in range(4):
                d = vr(ACC + 16 * i + 4 * s, 4)
                a("v_mfma_f32_16x16x32_bf16 %s, %s, %s, %s" % (d, vr(f + 16 + 4 * i, 4), vr(f + 4 * s, 4), "0" if first else d))
                if k < len(rds): a(rds[k]); k += 1
                elif extra:
                    a(extra.pop(0))
                    if len(extra) > 15 - (4 * i + s): a(extra.pop(0))
        assert k == len(rds) and not extra
    adv = ["v_add_u32 v%d, s35, v%d" % (v, v) for v in range(HA, WS1 + 1)]
    def sadv():
        a("s_add_u32 s34, s34, 1\ns_cmp_eq_u32 s34, %d\ns_cselect_b32 s35, s31, s30\ns_cselect_b32 s34, 0, s34" % K4_R)
    a("s_mov_b32 s34, 0\ns_mov_b32 s32, 1")
    a("s_waitcnt lgkmcnt(0)\ns_barrier")
    stamp(a, 1)
    if gen.STAMP: a("s_waitcnt lgkmcnt(0)")
    for r in reads(0, 0): a(r)
    sadv()
    a("s_waitcnt lgkmcnt(0)")
    phase(0, reads(1, 1), first=True, extra=adv)
    a("s_waitcnt lgkmcnt(0)\ns_barrier")
    phase(1, reads(0, 0))
    a("K4_CLOOP:")
    sadv()
    a("s_waitcnt lgkmcnt(0)")
    phase(0, reads(1, 1), extra=adv)
    a("s_waitcnt lgkmcnt(0)\ns_barrier")
    phase(1, reads(0, 0))
    a("s_add_u32 s32, s32, 1\ns_cmp_lt_u32 s32, %d\ns_cbranch_scc1 K4_CLOOP" % (K4_NST - 1))
    a("s_waitcnt lgkmcnt(0)")
    phase(0, reads(1, 1))
    a("s_waitcnt lgkmcnt(0)")
    phase(1, [])
    stamp(a, 2)
    a.srd(36, 12, WS_BYTES)
    a.srd(40, 6, MB4)
    a("s_lshl_b32 s21, s2, 15\ns_lshl_b32 s22, s16, 13\ns_add_u32 s21, s21, s22\ns_add_u32 s21, s21, 0x%x" % PX)
    a("v_lshlrev_b32 v8, 4, v1\nv_add_u32 v9, s21, v8")
    a("s_xor_b32 s21, s21, 0x8000\nv_add_u32 v10, s21, v8\ns_mov_b32 s22, 4096")
    a("s_lshl_b32 s21, s18, 13\ns_add_u32 s21, s21, %d\ns_lshl_b32 s23, s17, 7\nv_xor_b32 v14, s23, v14\nv_add_u32 v14, s21, v14" % K4_RES)
    a("v_xor_b32 v15, 32, v14\nv_xor_b32 v12, 64, v14\nv_xor_b32 v13, 96, v14")
    for j in range(8):
        a("buffer_store_dwordx4 %s, v9, s[36:39], %s offen offset:%d sc1" % (vr(ACC + 32 + 4 * j, 4), "0" if j < 4 else "s22", 1024 * (j % 4)))
    RS = 16
    for i in range(2):
        for s in range(4):
            a("ds_read_b64_tr_b16 %s, v%d offset:%d" % (vr(RS + 8 * i + 2 * s, 2), [14, 15, 12, 13][s], 4096 * i))
    a("v_and_b32 v11, 15, v1\nv_lshlrev_b32 v11, 11, v11\nv_lshlrev_b32 v12, 5, v5\nv_lshrrev_b32 v13, 1, v2\nv_lshlrev_b32 v13, 4, v13\nv_add3_u32 v11, v11, v12, v13")
    a("s_lshl_b32 s21, s14, 18\ns_lshl_b32 s23, s17, 17\ns_add_u32 s21, s21, s23\ns_lshl_b32 s23, s15, 8\ns_add_u32 s21, s21, s23")
    a("s_lshl_b32 s23, s19, 7\ns_add_u32 s21, s21, s23\ns_lshl_b32 s23, s18, 6\ns_add_u32 s21, s21, s23\nv_add_u32 v11, s21, v11")
    a("s_lshl_b32 s21, s2, 8\ns_add_u32 s21, s21, 0x%x\nv_mov_b32 v12, s21\ns_xor_b32 s21, s21, 256\nv_mov_b32 v13, s21\nv_mov_b32 v32, 1" % FLG)
    a("s_waitcnt vmcnt(0)\ns_barrier")
    stamp(a, 3)
    a("s_cmp_eq_u32 s16, 0\ns_cbranch_scc0 K4_WAITED")
    a("s_mov_b64 exec, 1")
    a("buffer_store_dword v32, v12, s[36:39], 0 offen sc1")
    a("s_mov_b32 s23, 0")
    a("K4_POLL:")
    a("buffer_load_dword v33, v13, s[36:39], 0 offen sc1\ns_waitcnt vmcnt(0)")
    a("v_readfirstlane_b32 s21, v33\ns_nop 0\ns_cmp_eq_u32 s21, 1\ns_cbranch_scc1 K4_GOT\ns_sleep 1\ns_add_u32 s23, s23, 1\ns_cmp_lt_u32 s23, 0x400000\ns_cbranch_scc1 K4_POLL")
    a("K4_GOT:\ns_mov_b64 exec, -1")
    a("K4_WAITED:")
    a("s_barrier")
    stamp(a, 4)
    PO = 48
    for j in range(8):
        a("buffer_load_dwordx4 %s, v10, s[36:39], %s offen offset:%d sc1" % (vr(PO + 4 * j, 4), "0" if j < 4 else "s22", 1024 * (j % 4)))
    a("s_mov_b32 s33, 0xffff0000\ns_mov_b32 s24, 32768\ns_mov_b32 s25, 65536\ns_mov_b32 s26, 98304")
    a("s_waitcnt lgkmcnt(0)")
    T = 112; OUT = 144
    for s in range(4):
        a("s_waitcnt vmcnt(%d)" % (3 - s + s))
        for i in range(2):
            z = ACC + 16 * i + 4 * s; p = PO + 16 * i + 4 * s; t = T + 8 * i; r = RS + 8 * i + 2 * s
            for e in range(4): a("v_add_f32 v%d, v%d, v%d" % (z + e, z + e, p + e))
            a("v_cvt_pk_bf16_f32 v%d, v%d, v%d\nv_cvt_pk_bf16_f32 v%d, v%d, v%d" % (z, z, z + 1, z + 2, z + 2, z + 3))
            a("v_and_b32 v%d, s33, v%d\nv_lshlrev_b32 v%d, 16, v%d" % (z + 1, z, z, z))
            a("v_and_b32 v%d, s33, v%d\nv_lshlrev_b32 v%d, 16, v%d" % (z + 3, z + 2, z + 2, z + 2))
            a("v_lshlrev_b32 v%d, 16, v%d\nv_and_b32 v%d, s33, v%d" % (t, r, t + 1, r))
            a("v_lshlrev_b32 v%d, 16, v%d\nv_and_b32 v%d, s33, v%d" % (t + 2, r + 1, t + 3, r + 1))
            for e in range(4): a("v_add_f32 v%d, v%d, v%d" % (z + e, z + e, t + e))
            o = OUT + 4 * s + 2 * i
            a("v_cvt_pk_bf16_f32 v%d, v%d, v%d\nv_cvt_pk_bf16_f32 v%d, v%d, v%d" % (o, z, z + 1, o + 1, z + 2, z + 3))
        o = OUT + 4 * s
        a("s_nop 1")
        a("v_permlane16_swap_b32 v%d, v%d\nv_permlane16_swap_b32 v%d, v%d" % (o, o + 2, o + 1, o + 3))
        a("buffer_store_dwordx4 %s, v11, s[40:43], %s offen%s" % (vr(o, 4), ["0", "s24", "s25", "s26"][s], sflag("k4")))
    stamp(a, 5)
    if gen.STAMP: a("s_waitcnt vmcnt(0)")
    stamp(a, 6)
    stamp_store(a, 3, 16, 8, 12)
    a("K4_END:\ns_endpgm")

if __name__ == "__main__":
    gen.STAMP = "s_memrealtime" if "--stamp" in sys.argv else ("s_memtime" if "--stampc" in sys.argv else False)
    OPT.update(x[2:] for x in sys.argv[1:] if x.startswith("--"))
    a = Asm()
    gen_k1(a)
    gen_k2(a, prefetch="--nopf" not in sys.argv)
    gen_k3(a)
    if "--no4" not in sys.argv: gen_k4(a)
    hdr = open("sequential_preLN__ssm_conv_h3__dense_activation_silu__prompt.s.ref").read().split("; Override launch")[0]
    sys.stdout.write(a.text(hdr))
```

```python
import sys
from asmlib import Asm

KVB = 0x000000
XB  = 0x400000
ST1 = 0x800000
HT  = 0xC00000
H1  = 0x1000000
H1_BYTES = 16 * 112 * 8 * 1024
PX  = 0x2000000
FLG = 0x2800000
MB4 = 0x400000
W1P = 0x3000000
W2P = 0x3800000
WS_BYTES = 0x4000000
CNT = 0x980000
CNT2 = CNT + 16 * 256
XSP = 0x9A0000
OPT = set()
ONES = 0x3f803f80

def sflag(k):
    for o, f in (("sc01", " sc0 sc1"), ("sc1", " sc1"), ("nt", " nt")):
        if k + o in OPT: return f
    return "" if k + "wb" in OPT else " sc0 sc1"
def vr(b, n):
    return "v[%d:%d]" % (b, b + n - 1) if n > 1 else "v%d" % b
def sr(b, n):
    return "s[%d:%d]" % (b, b + n - 1) if n > 1 else "s%d" % b

STAMP = False
STB = 0x4000000
def stamp(a, i):
    if STAMP: a("%s s[%d:%d]" % (STAMP, 70 + 2 * i, 71 + 2 * i))
def stamp_store(a, kidx, wavesgpr, nw, ws_lo):
    if not STAMP: return
    a("s_waitcnt lgkmcnt(0)")
    a("s_mul_i32 s86, s2, %d\ns_add_u32 s86, s86, s%d\ns_lshl_b32 s86, s86, 5\ns_add_u32 s86, s86, 0x%x" % (nw, wavesgpr, STB + kidx * 0x100000))
    a("s_mov_b64 exec, 1")
    a("v_mov_b32 v1, s86")
    for i in range(8): a("v_mov_b32 v%d, s%d" % (2 + i, 70 + 2 * i))
    a("global_store_dwordx4 v1, v[2:5], s[%d:%d]\nglobal_store_dwordx4 v1, v[6:9], s[%d:%d] offset:16" % (ws_lo, ws_lo + 1, ws_lo, ws_lo + 1))

def code_prefetch(a, end, nkb, vtmp, vdst, lanereg):
    if "nocpf" in OPT: return 0
    L = a.label("CPF")
    a("s_getpc_b64 s[62:63]")
    a("%s:" % L)
    a("s_and_b32 s62, s62, 0xfffffff0")
    a("s_lshr_b32 s64, s2, 3\ns_lshl_b32 s64, s64, 10\nv_lshlrev_b32 v%d, 4, v%d\nv_add_u32 v%d, s64, v%d" % (vtmp, lanereg, vtmp, vtmp))
    n = (nkb + 31) // 32
    for i in range(n):
        if i: a("v_add_u32 v%d, 0x8000, v%d" % (vtmp, vtmp))
        a("v_min_u32 v%d, (%s-%s-32)&0xfffffff0, v%d" % (vdst + 4, end, L, vtmp))
        a("global_load_dwordx4 %s, v%d, s[62:63]" % (vr(vdst, 4), vdst + 4))
    return n

def stats_finish(a, S, Q, T1, T2, n):
    a("v_mul_f32 v%d, 0x%x, v%d" % (S, f32bits(1.0 / n), S))
    a("v_mul_f32 v%d, 0x%x, v%d" % (Q, f32bits(1.0 / n), Q))
    a("v_fma_f32 v%d, -v%d, v%d, v%d" % (Q, S, S, Q))
    a("v_max_f32 v%d, 0, v%d" % (Q, Q))
    a("v_cvt_pk_bf16_f32 v%d, v%d, v%d" % (T1, Q, Q))
    a("v_lshlrev_b32 v%d, 16, v%d" % (T1, T1))
    a("v_add_f32 v%d, 0x%x, v%d" % (T1, f32bits(1e-5), T1))
    a("v_cvt_pk_bf16_f32 v%d, v%d, v%d" % (T1, T1, T1))
    a("v_lshlrev_b32 v%d, 16, v%d" % (T1, T1))
    a("v_sqrt_f32 v%d, v%d" % (T1, T1))
    a("s_nop 0")
    a("v_cvt_pk_bf16_f32 v%d, v%d, v%d" % (S, S, T1))

import struct
def f32bits(x):
    return struct.unpack("<I", struct.pack("<f", x))[0]

def gen_k1(a):
    a.begin("k1_kernel", 256, 256, 512, vgpr=192, sgpr=96)
    a("s_cmp_ge_u32 s2, 256\ns_cbranch_scc1 K1_END")
    a("s_load_dwordx4 s[4:7], s[0:1], 0\ns_load_dwordx4 s[24:27], s[0:1], 16\ns_load_dwordx2 s[28:29], s[0:1], 88\ns_load_dwordx2 s[44:45], s[0:1], 32")
    a("v_cmp_gt_u32 vcc, 64, v0\ns_and_saveexec_b64 s[66:67], vcc\ns_cbranch_execz K1_NOCPF")
    code_prefetch(a, "K4_END", 40, 180, 184, 0)
    a("K1_NOCPF:\ns_mov_b64 exec, s[66:67]")
    a("s_lshl_b32 s3, s2, 14")
    a("v_lshlrev_b32 v1, 3, v0\nv_add_u32 v1, s3, v1")
    a("v_add_u32 v2, 0xffffe800, v1")
    a("v_add_u32 v3, 0xfffff800, v1")
    a("v_lshlrev_b32 v4, 5, v0")
    a("s_mov_b32 s30, 4096\ns_mov_b32 s31, 8192\ns_mov_b32 s32, 12288")
    a("s_waitcnt lgkmcnt(0)")
    a.srd(8, 4, MB4); a.srd(12, 6, MB4); a.srd(16, 24, MB4); a.srd(20, 26, 8192); a.srd(36, 28, 0x1000000)
    KR, VR, XR, SH = 10, 32, 48, 64
    NT = " nt" if "nt" in OPT else ""
    def rowload(dst, srd, r):
        so = ["0", "s30", "s31", "s32"][r // 2]
        a("buffer_load_dwordx2 %s, v1, %s, %s offen offset:%d%s" % (vr(dst, 2), sr(srd, 4), so, (r % 2) * 2048, NT))
    a("buffer_load_dwordx4 %s, v4, s[20:23], 0 offen" % vr(SH, 4))
    a("buffer_load_dwordx4 %s, v4, s[20:23], 0 offen offset:16" % vr(SH + 4, 4))
    a("buffer_load_dwordx2 %s, v2, s[12:15], 0 offen%s" % (vr(KR, 2), NT))
    a("buffer_load_dwordx2 %s, v2, s[12:15], 0 offen offset:2048%s" % (vr(KR + 2, 2), NT))
    a("buffer_load_dwordx2 %s, v3, s[12:15], 0 offen%s" % (vr(KR + 4, 2), NT))
    for r in range(8): rowload(KR + 6 + 2 * r, 12, r)
    for r in range(8): rowload(VR + 2 * r, 16, r)
    for r in range(8): rowload(XR + 2 * r, 8, r)
    NP = 0
    a("s_mov_b32 s33, 0xffff0000\ns_mov_b32 s34, 0x05040100\ns_mov_b32 s35, 0x07060302\ns_mov_b32 s40, 0x%x" % ONES)
    a("v_lshlrev_b32 v5, 4, v0\nv_add_u32 v5, s3, v5")
    if "nok1pf" not in OPT:
        a.srd(48, 44, MB4)
        for c in range(4):
            a("buffer_load_dwordx4 %s, v5, s[48:51], %s offen" % (vr(164 + 4 * c, 4), ["0", "s30", "s31", "s32"][c]))
        NP = 4
    a("s_lshl_b32 s41, s2, 3\nv_add_u32 v5, s41, v0\nv_and_b32 v5, 255, v5\nv_lshlrev_b32 v5, 4, v5\nv_add_u32 v5, s3, v5")
    WF, KF, KS = 72, 88, 132
    a("s_waitcnt vmcnt(%d)" % (27 + NP))
    for c in range(4):
        for j in range(4):
            src = SH + 2 * c + j // 2
            if j % 2 == 0: a("v_lshlrev_b32 v%d, 16, v%d" % (WF + 4 * j + c, src))
            else: a("v_and_b32 v%d, s33, v%d" % (WF + 4 * j + c, src))
    def unpack(dst, src):
        a("v_lshlrev_b32 v%d, 16, v%d\nv_and_b32 v%d, s33, v%d" % (dst, src, dst + 1, src))
        a("v_lshlrev_b32 v%d, 16, v%d\nv_and_b32 v%d, s33, v%d" % (dst + 2, src + 1, dst + 3, src + 1))
    a("s_waitcnt vmcnt(%d)" % (16 + NP))
    for r in range(11): unpack(KF + 4 * r, KR + 2 * r)
    for r in range(8):
        for j in (3, 2, 1, 0):
            for p in range(2):
                d = KS + 4 * r + 2 * p; w = WF + 4 * j + 2 * p; k = KF + 4 * (r + 3 - j) + 2 * p
                if j == 3: a("v_pk_mul_f32 %s, %s, %s" % (vr(d, 2), vr(w, 2), vr(k, 2)))
                else: a("v_pk_fma_f32 %s, %s, %s, %s" % (vr(d, 2), vr(w, 2), vr(k, 2), vr(d, 2)))
    a("s_waitcnt vmcnt(%d)" % (8 + NP))
    VF = KF
    for r in range(8): unpack(VF + 4 * r, VR + 2 * r)
    for r in range(8):
        for p in range(2):
            d = KS + 4 * r + 2 * p
            a("v_pk_mul_f32 %s, %s, %s" % (vr(d, 2), vr(d, 2), vr(VF + 4 * r + 2 * p, 2)))
    G = 10
    G = 12
    for c in range(4):
        for d in range(4):
            a("v_cvt_pk_bf16_f32 v%d, v%d, v%d" % (G + 4 * c + d, KS + 4 * (7 - 2 * d) + c, KS + 4 * (6 - 2 * d) + c))
    for c in range(4):
        so = ["0", "s30", "s31", "s32"][c]
        a("buffer_store_dwordx4 %s, v5, s[36:39], %s offen%s" % (vr(G + 4 * c, 4), so, sflag("k1")))
    a("v_add_u32 v6, 0x%x, v5" % XB)
    a("s_waitcnt vmcnt(%d)" % (4 + NP))
    G2 = 72
    for c in range(4):
        for d in range(4):
            a("v_perm_b32 v%d, v%d, v%d, s%d" % (G2 + 4 * c + d, XR + 2 * (2 * d + 1) + c // 2, XR + 2 * (2 * d) + c // 2, 34 + (c & 1)))
    for c in range(4):
        so = ["0", "s30", "s31", "s32"][c]
        a("buffer_store_dwordx4 %s, v6, s[36:39], %s offen%s" % (vr(G2 + 4 * c, 4), so, sflag("k1")))
    R = 88
    for r in range(8):
        a("v_dot2_f32_bf16 v%d, v%d, s40, 0" % (R + r, XR + 2 * r))
        a("v_dot2_f32_bf16 v%d, v%d, v%d, 0" % (R + 8 + r, XR + 2 * r, XR + 2 * r))
    for r in range(8):
        a("v_dot2_f32_bf16 v%d, v%d, s40, v%d" % (R + r, XR + 2 * r + 1, R + r))
        a("v_dot2_f32_bf16 v%d, v%d, v%d, v%d" % (R + 8 + r, XR + 2 * r + 1, XR + 2 * r + 1, R + 8 + r))
    a("s_nop 2")
    for i in range(8): a("v_permlane32_swap_b32 v%d, v%d" % (R + i, R + 8 + i))
    for i in range(8): a("v_add_f32 v%d, v%d, v%d" % (R + i, R + i, R + 8 + i))
    a("s_nop 1")
    for i in range(4): a("v_permlane16_swap_b32 v%d, v%d" % (R + i, R + 4 + i))
    for i in range(4): a("v_add_f32 v%d, v%d, v%d" % (R + i, R + i, R + 4 + i))
    for sh in (8, 4, 2, 1):
        for i in range(4):
            a("v_add_f32_dpp v%d, v%d, v%d row_ror:%d row_mask:0xf bank_mask:0xf" % (R + i, R + i, R + i, sh))
    a("v_and_b32 v7, 15, v0\nv_cmp_eq_u32 vcc, 0, v7\nv_and_b32 v8, 0xf0, v0")
    a("s_and_saveexec_b64 s[42:43], vcc")
    a("ds_write_b128 v8, %s" % vr(R, 4))
    a("s_mov_b64 exec, s[42:43]")
    a("s_waitcnt lgkmcnt(0)\ns_barrier")
    a("v_cmp_gt_u32 vcc, 8, v0\ns_and_saveexec_b64 s[42:43], vcc\ns_cbranch_execz K1_END")
    a("v_lshlrev_b32 v8, 2, v0")
    for w in range(4):
        a("ds_read_b32 v%d, v8 offset:%d\nds_read_b32 v%d, v8 offset:%d" % (R + w, 64 * w, R + 4 + w, 64 * w + 32))
    a("s_lshl_b32 s3, s2, 5\ns_add_u32 s3, s3, 0x%x\nv_add_u32 v8, s3, v8" % ST1)
    a("s_waitcnt lgkmcnt(0)")
    a("v_add_f32 v%d, v%d, v%d\nv_add_f32 v%d, v%d, v%d\nv_add_f32 v%d, v%d, v%d" % (R, R, R + 1, R + 2, R + 2, R + 3, R, R, R + 2))
    a("v_add_f32 v%d, v%d, v%d\nv_add_f32 v%d, v%d, v%d\nv_add_f32 v%d, v%d, v%d" % (R + 4, R + 4, R + 5, R + 6, R + 6, R + 7, R + 4, R + 4, R + 6))
    stats_finish(a, R, R + 4, R + 5, R + 6, 1024)
    a("buffer_store_dword v%d, v8, s[36:39], 0 offen" % R)
    a("s_cmp_lt_u32 s2, 144\ns_cbranch_scc0 K1_END\ns_mov_b64 exec, 1")
    a("s_lshl_b32 s3, s2, 8\ns_add_u32 s3, s3, 0x%x\nv_mov_b32 v8, s3\nv_mov_b32 v9, 0" % CNT)
    a("buffer_store_dword v9, v8, s[36:39], 0 offen")
    a("K1_END:\ns_endpgm")

K2_KC = 0; K2_CS = 4160; K2_CH = 4 * K2_CS
K2_U = 4 * K2_CH
K2_X = K2_U + 288 * 64
K2_ST = K2_X + 16384
K2_RED = K2_ST + 8192
K2_CSUM = K2_RED + 32768
K2_FL = K2_CSUM + 8192
K2_LDS = K2_FL + 64
CSP = 0x900000

def gen_k2(a, prefetch=True):
    a.begin("k2_kernel", 256, 768, K2_LDS, vgpr=160, sgpr=96)
    a("s_cmp_ge_u32 s2, 256\ns_cbranch_scc1 K2_END")
    for i in range(8): stamp(a, i)
    a("s_load_dwordx4 s[4:7], s[0:1], 32\ns_load_dwordx4 s[8:11], s[0:1], 56\ns_load_dwordx2 s[12:13], s[0:1], 88")
    a("s_and_b32 s14, s2, 7\ns_lshl_b32 s14, s14, 5\ns_lshr_b32 s15, s2, 3\ns_add_u32 s14, s14, s15")
    a("s_lshr_b32 s15, s14, 6\ns_and_b32 s14, s14, 63")
    a("v_lshrrev_b32 v2, 6, v0\nv_and_b32 v1, 63, v0\ns_nop 0\nv_readfirstlane_b32 s16, v2")
    a("s_nop 1")
    a("s_cmp_lt_u32 s16, 8\ns_cbranch_scc1 K2_COMP")
    a("s_sub_u32 s17, s16, 8")
    a("s_cmp_eq_u32 s17, 3\ns_cbranch_scc0 K2_NOCPF")
    code_prefetch(a, "K2_END", 10, 96, 100, 1)
    a("K2_NOCPF:")
    a("v_lshrrev_b32 v2, 4, v1\nv_and_b32 v3, 3, v1\nv_xor_b32 v2, v2, v3\ns_lshl_b32 s21, s14, 2\nv_add_u32 v2, s21, v2")
    a("v_lshrrev_b32 v3, 2, v1\ns_lshl_b32 s20, s17, 6\nv_add_u32 v3, s20, v3\ns_lshl_b32 s20, s15, 12")
    a("v_lshl_add_u32 v4, v3, 3, v2\nv_and_b32 v4, 255, v4\nv_lshlrev_b32 v4, 4, v4\nv_lshlrev_b32 v5, 14, v3\nv_add3_u32 v4, v4, v5, s20")
    a("v_xor_b32 v15, 2048, v4")
    a("v_sub_u32 v3, 207, v3")
    a("v_lshl_add_u32 v5, v3, 3, v2\nv_and_b32 v5, 255, v5\nv_lshlrev_b32 v5, 4, v5\nv_lshlrev_b32 v3, 14, v3\nv_add3_u32 v5, v5, v3, s20")
    a("v_xor_b32 v3, 2048, v5")
    a("s_waitcnt lgkmcnt(0)")
    a.srd(28, 12, WS_BYTES)
    for qq in range(4):
        a("s_mov_b32 s21, 0x%x" % ((3 - qq) * 0x40000))
        a("s_lshl_b32 s20, s17, 12\ns_add_u32 m0, s20, %d\ns_nop 0" % (K2_U + 1024 * qq))
        a("buffer_load_dwordx4 v%d, s[28:31], s21 offen lds" % (5 if qq & 1 else 3))
    a("v_mov_b32 v8, 0\nv_mov_b32 v9, 0\nv_mov_b32 v10, 0\nv_mov_b32 v11, 0\nv_lshlrev_b32 v6, 4, v1")
    a("s_lshl_b32 s20, s17, 10\ns_add_u32 s20, s20, %d\nv_add_u32 v7, s20, v6" % (K2_U + 16384))
    a("s_cmp_lt_u32 s17, 2\ns_cbranch_scc0 K2_NOPAD")
    a("ds_write_b128 v7, v[8:11]")
    a("K2_NOPAD:")
    a("v_mov_b32 v7, %d\nds_write_b128 v7, v[8:11]\nds_write_b128 v7, v[8:11] offset:16\nds_write_b128 v7, v[8:11] offset:32" % K2_FL)
    a.srd(36, 8, 7340032)
    a("s_lshr_b32 s20, s2, 4\ns_lshl_b32 s20, s20, 6\ns_lshl_b32 s21, s17, 4\ns_add_u32 s20, s20, s21\ns_mul_i32 s20, s20, 7168")
    a("s_and_b32 s21, s2, 15\ns_mul_i32 s21, s21, 448\ns_add_u32 s20, s20, s21")
    a("v_lshrrev_b32 v12, 5, v1\nv_mul_u32_u24 v12, 7168, v12\nv_and_b32 v13, 31, v1\nv_lshlrev_b32 v14, 4, v13\nv_add3_u32 v12, v12, v14, s20")
    WD = 16
    NT = " nt" if "nt" in OPT else ""
    SF = sflag("st")
    a.srd(40, 10, 7340032)
    a("s_and_b32 s20, s2, 31\ns_mul_i32 s20, s20, 28\ns_mul_i32 s21, s17, 7\ns_add_u32 s26, s20, s21")
    a("s_lshr_b32 s27, s2, 5\ns_lshl_b32 s32, s26, 13\ns_lshl_b32 s21, s27, 8\ns_add_u32 s32, s32, s21")
    a("v_lshrrev_b32 v92, 4, v1\nv_and_b32 v93, 15, v1\nv_lshlrev_b32 v94, 1, v92\nv_xor_b32 v93, v93, v94")
    a("s_and_b32 s21, s26, 1\ns_lshl_b32 s21, s21, 3\nv_xor_b32 v93, s21, v93\nv_lshlrev_b32 v93, 4, v93\nv_lshl_add_u32 v92, v92, 11, v93\nv_xor_b32 v93, 128, v92")
    for i in range(7):
        a("buffer_load_dwordx4 %s, v%d, s[40:43], s32 offen%s\ns_add_u32 s32, s32, 8192" % (vr(64 + 4 * i, 4), 92 + (i & 1), NT))
    stamp(a, 1)
    a("s_waitcnt vmcnt(7) lgkmcnt(0)\ns_barrier")
    stamp(a, 2)
    for qq in range(4):
        a("s_mov_b32 s21, 0x%x" % (XB + qq * 0x40000))
        a("s_lshl_b32 s20, s17, 12\ns_add_u32 m0, s20, %d\ns_nop 0" % (K2_X + 1024 * qq))
        a("buffer_load_dwordx4 v%d, s[28:31], s21 offen lds" % (15 if qq & 1 else 4))
    for qq in range(2):
        a("s_lshl_b32 s20, s17, 11\ns_add_u32 m0, s20, %d\ns_add_u32 s21, s20, 0x%x" % (K2_ST + 1024 * qq, ST1 + 1024 * qq))
        a("buffer_load_dwordx4 v6, s[28:31], s21 offen lds")
    a("s_mul_i32 s27, s27, %d\ns_add_u32 s27, s27, 0x%x" % (112 * 8192, W2P))
    a("v_cmp_gt_u32 vcc, 28, v13\ns_and_saveexec_b64 s[22:23], vcc")
    for i in range(8):
        a("s_mov_b32 s21, %d" % (2 * i * 7168))
        a("buffer_load_dwordx4 %s, v12, s[36:39], s21 offen%s" % (vr(WD + 4 * i, 4), NT if "w1p" in OPT else ""))
    a("s_mov_b64 exec, s[22:23]")
    a("s_lshl_b32 s20, s17, 2\ns_add_u32 s20, s20, %d\nv_mov_b32 v7, s20\nv_mov_b32 v14, 1" % (K2_FL + 32))
    stamp(a, 3)
    a("s_waitcnt vmcnt(8)\nds_write_b32 v7, v14")
    stamp(a, 4)
    for i in range(7):
        a("s_lshr_b32 s44, s26, 3\ns_mul_i32 s45, s44, 147\ns_lshr_b32 s45, s45, 10\ns_mul_i32 s46, s45, 7\ns_sub_u32 s44, s44, s46")
        a("s_and_b32 s46, s45, 7\ns_lshr_b32 s45, s45, 3\ns_mul_i32 s45, s45, 56")
        a("s_and_b32 s47, s44, 3\ns_lshl_b32 s47, s47, 4\ns_lshr_b32 s48, s44, 2\ns_add_u32 s47, s47, s48\ns_lshl_b32 s48, s46, 1\ns_add_u32 s47, s47, s48")
        a("s_add_u32 s46, s46, 48\ns_cmp_eq_u32 s44, 3\ns_cselect_b32 s47, s46, s47\ns_add_u32 s45, s45, s47\ns_lshl_b32 s45, s45, 3")
        a("s_and_b32 s46, s26, 7\ns_add_u32 s45, s45, s46\ns_lshl_b32 s45, s45, 10\ns_add_u32 s35, s45, s27\ns_add_u32 s26, s26, 1")
        a("buffer_store_dwordx4 %s, v6, s[28:31], s35 offen%s" % (vr(64 + 4 * i, 4), SF))
    a("v_mov_b32 v8, 0\nv_mov_b32 v9, 0\nv_mov_b32 v10, 0\nv_mov_b32 v11, 0")
    a("s_lshl_b32 s20, s2, 14\ns_lshl_b32 s32, s17, 12\ns_add_u32 s20, s20, s32\ns_add_u32 s20, s20, 0x%x" % PX)
    for i in range(4): a("buffer_store_dwordx4 v[8:11], v6, s[28:31], s20 offen offset:%d sc0 sc1" % (1024 * i))
    a("s_mov_b32 s24, 0x00003f80\ns_mov_b32 s25, 0x3f800000")
    CA = 48
    if "w1p" in OPT:
        a("s_and_b32 s20, s2, 15\ns_lshl_b32 s20, s20, 10\ns_lshr_b32 s21, s2, 4\ns_lshl_b32 s21, s21, 6\ns_add_u32 s20, s20, s21\ns_lshl_b32 s21, s17, 4\ns_add_u32 s20, s20, s21")
        a("s_mul_i32 s34, s20, 448\ns_add_u32 s34, s34, 0x%x" % W1P)
        a("v_lshrrev_b32 v10, 5, v1\nv_mul_u32_u24 v10, 448, v10\nv_lshl_add_u32 v10, v13, 4, v10\nv_lshlrev_b32 v11, 4, v13\nv_xor_b32 v11, 32, v11")
        a("v_lshrrev_b32 v7, 5, v1\nv_mul_u32_u24 v7, 448, v7\nv_add_u32 v11, v11, v7")
        a("s_waitcnt vmcnt(0)")
        a("v_cmp_gt_u32 vcc, 28, v13\ns_and_saveexec_b64 s[22:23], vcc")
        for i in range(8):
            a("buffer_store_dwordx4 %s, v%d, s[28:31], s34 offen%s\ns_add_u32 s34, s34, 896" % (vr(WD + 4 * i, 4), 11 if i & 2 else 10, SF))
        a("s_mov_b64 exec, s[22:23]")
    else:
        a("s_waitcnt vmcnt(11)")
    for i in range(8):
        for d in range(4):
            for hh in range(2):
                c = CA + 2 * d + hh
                a("v_dot2_f32_bf16 v%d, v%d, s%d, %s" % (c, WD + 4 * i + d, 24 + hh, "0" if i == 0 else "v%d" % c))
    a("v_lshlrev_b32 v14, 5, v1\ns_lshl_b32 s20, s17, 11\ns_add_u32 s20, s20, %d\nv_add_u32 v14, s20, v14\ns_nop 0" % K2_CSUM)
    a("ds_write_b128 v14, %s\nds_write_b128 v14, %s offset:16" % (vr(CA, 4), vr(CA + 4, 4)))
    a("s_mul_i32 s20, s17, 224\nv_lshlrev_b32 v14, 2, v1\nv_add_u32 v14, s20, v14")
    a("s_lshr_b32 s20, s2, 4\ns_mul_i32 s20, s20, 14336\ns_and_b32 s21, s2, 15\ns_mul_i32 s21, s21, 896\ns_add_u32 s20, s20, s21\ns_add_u32 s20, s20, 0x%x" % CSP)
    stamp(a, 5)
    a("s_waitcnt lgkmcnt(0)\ns_barrier")
    stamp(a, 6)
    a("v_add_u32 v15, %d, v14" % K2_CSUM)
    for p in range(8): a("ds_read_b32 v%d, v15 offset:%d" % (16 + p, 1024 * p))
    a("s_mov_b32 exec_hi, 0x00ffffff\ns_waitcnt lgkmcnt(0)")
    for st in (4, 2, 1):
        for p in range(st): a("v_add_f32 v%d, v%d, v%d" % (16 + p, 16 + p, 16 + st + p))
    a("buffer_store_dword v16, v14, s[28:31], s20 offen")
    a("s_mov_b64 exec, -1")
    stamp(a, 7)
    stamp_store(a, 1, 16, 12, 12)
    a("s_endpgm")
    a("K2_COMP:")
    a("s_and_b32 s17, s16, 3\ns_lshr_b32 s18, s16, 2")
    a("s_lshl_b32 s19, s14, 4\ns_lshl_b32 s20, s17, 2\ns_add_u32 s19, s19, s20\ns_add_u32 s19, s19, s15")
    a("s_lshl_b32 s20, s18, 11\nv_lshlrev_b32 v3, 4, v1\nv_add_u32 v3, s20, v3")
    a("v_add_u32 v4, -8, v3")
    a("v_lshlrev_b32 v5, 4, v1\nv_add_u32 v5, 0xffffffe0, v5")
    a("v_cmp_eq_u32 vcc, 2, v1\nv_mov_b32 v6, 4096\ns_nop 0\nv_cndmask_b32 v5, v5, v6, vcc")
    a("v_add_u32 v6, -8, v5")
    a("s_waitcnt lgkmcnt(0)")
    a("s_lshl_b32 s20, s19, 12\ns_add_u32 s4, s4, s20\ns_addc_u32 s5, s5, 0")
    a.srd(24, 4, 4096)
    NTK = " nt" if ("nok1pf" in OPT and "nt" in OPT) else ""
    DK = [48, 56, 64]
    a("buffer_load_dwordx4 %s, v3, s[24:27], 0 offen%s" % (vr(DK[0] + 4, 4), NTK))
    a("buffer_load_dwordx2 %s, v4, s[24:27], 0 offen%s" % (vr(DK[0] + 2, 2), NTK))
    a("buffer_load_dwordx4 %s, v3, s[24:27], 0 offen offset:1024%s" % (vr(DK[1] + 4, 4), NTK))
    a("buffer_load_dwordx2 %s, v3, s[24:27], 0 offen offset:1016%s" % (vr(DK[1] + 2, 2), NTK))
    a("s_mov_b64 exec, 7")
    a("buffer_load_dwordx4 %s, v5, s[24:27], 0 offen" % vr(DK[2] + 4, 4))
    a("buffer_load_dwordx2 %s, v6, s[24:27], 0 offen" % vr(DK[2] + 2, 2))
    a("s_mov_b64 exec, -1")
    a.srd(28, 12, WS_BYTES)
    a("s_lshl_b32 s20, s19, 1\ns_and_b32 s20, s20, 0xfffffffc\ns_add_u32 s6, s6, s20\ns_addc_u32 s7, s7, 0")
    a("s_load_dword s21, s[6:7], 0")
    a("s_mul_i32 s20, s17, %d\ns_add_u32 s20, s20, 32\nv_add_u32 v14, s20, v3\nv_add_u32 v15, s20, v5" % K2_CH)
    a("v_and_b32 v2, 15, v1\nv_lshrrev_b32 v3, 4, v1")
    a("v_and_b32 v4, 1, v3\nv_lshrrev_b32 v5, 1, v3")
    a("v_sub_u32 v6, 3, v2\nv_and_b32 v6, 3, v6\nv_mul_u32_u24 v6, %d, v6" % K2_CS)
    a("v_lshrrev_b32 v7, 2, v2\nv_lshlrev_b32 v7, 3, v7\nv_add_u32 v6, v6, v7")
    a("v_lshlrev_b32 v7, 5, v5\nv_add_u32 v6, v6, v7\nv_lshlrev_b32 v7, 4, v4\nv_sub_u32 v6, v6, v7")
    a("s_mul_i32 s20, s17, %d\ns_lshl_b32 s32, s18, 8\ns_add_u32 s20, s20, s32\ns_add_u32 s20, s20, 24\nv_add_u32 v6, s20, v6" % K2_CH)
    BA = 8
    a("v_lshlrev_b32 v7, 1, v5\nv_sub_u32 v7, v7, v4\nv_lshlrev_b32 v12, 1, v2\nv_sub_u32 v7, v7, v12")
    a("s_lshl_b32 s20, s18, 4\ns_add_u32 s20, s20, 31\nv_add_u32 v7, s20, v7\ns_mov_b32 s32, %d" % K2_U)
    for ee in range(4):
        a("v_add_u32 v12, %d, v7\nv_lshrrev_b32 v13, 2, v12\nv_and_b32 v13, 3, v13\nv_xor_b32 v13, s17, v13" % (4 * ee))
        a("v_lshlrev_b32 v13, 4, v13\nv_lshlrev_b32 v12, 6, v12\nv_add3_u32 v%d, v12, v13, s32" % (BA + ee))
    stamp(a, 1)
    T = 72
    for p in range(3):
        D = DK[p] + 4
        a("s_waitcnt vmcnt(%d)" % (4 - 2 * p))
        if p == 2: a("s_mov_b64 exec, 7")
        t = T + 12 * p
        for i in range(4): a("v_alignbit_b32 v%d, v%d, v%d, 16" % (t + i, D + i, D + i - 1))
        for i in range(4): a("v_mov_b32 v%d, v%d" % (t + 4 + i, D + i - 1))
        for i in range(4): a("v_alignbit_b32 v%d, v%d, v%d, 16" % (t + 8 + i, D + i - 1, D + i - 2))
        ad = "v14" if p < 2 else "v15"
        off = 1024 * p if p < 2 else 0
        a("ds_write_b128 %s, %s offset:%d" % (ad, vr(D, 4), off))
        for sg in range(1, 4):
            a("ds_write_b128 %s, %s offset:%d" % (ad, vr(t + 4 * (sg - 1), 4), off + sg * K2_CS))
    a("s_mov_b64 exec, -1")
    stamp(a, 2)
    a("s_waitcnt lgkmcnt(0)\ns_barrier")
    stamp(a, 3)
    if STAMP: a("s_waitcnt lgkmcnt(0)")
    ACC = 16; FR = 48
    def fr(gi): return FR + 8 * (gi % 12)
    def rd(gi):
        ee, n = divmod(gi, 8); f = fr(gi)
        a("ds_read_b64 %s, v6 offset:%d" % (vr(f, 2), 512 * n + 64 * ee))
        a("ds_read_b64 %s, v6 offset:%d" % (vr(f + 2, 2), 512 * n + 64 * ee + 8))
        a("ds_read_b128 %s, v%d offset:%d" % (vr(f + 4, 4), BA + ee, 2048 * (7 - n)))
    order = []
    for n in range(8):
        grp = []
        for o in range(n):
            if n + o <= 7: grp += [(n, o), (o, n)]
        if 2 * n <= 7: grp.append((n, n))
        order.append(grp)
    for gi in range(4): rd(gi)
    touched = set()
    for gi in range(32):
        ee, n = divmod(gi, 8)
        a("s_waitcnt lgkmcnt(%d)" % (3 * min(3, 31 - gi)))
        first = True
        for (i, m) in order[n]:
            t = i + m
            c = vr(ACC + 4 * t, 4) if t in touched else "0"
            touched.add(t)
            a("v_mfma_f32_16x16x32_bf16 %s, %s, %s, %s" % (vr(ACC + 4 * t, 4), vr(fr(8 * ee + i), 4), vr(fr(8 * ee + m) + 4, 4), c))
            if first and gi + 4 < 32: rd(gi + 4)
            first = False
    stamp(a, 4)
    a("s_lshl_b32 s20, s16, 12\ns_add_u32 s20, s20, %d\nv_lshlrev_b32 v12, 4, v1\nv_add_u32 v13, s20, v12" % K2_RED)
    a("s_xor_b32 s20, s16, 4\ns_lshl_b32 s20, s20, 12\ns_add_u32 s20, s20, %d\nv_add_u32 v14, s20, v12" % K2_RED)
    a("s_nop 3")
    a("s_cmp_eq_u32 s18, 0\ns_cbranch_scc0 K2_SEND_LO")
    for tt in range(4): a("ds_write_b128 v13, %s offset:%d" % (vr(ACC + 16 + 4 * tt, 4), 1024 * tt))
    a("s_branch K2_SENT")
    a("K2_SEND_LO:")
    for tt in range(4): a("ds_write_b128 v13, %s offset:%d" % (vr(ACC + 4 * tt, 4), 1024 * tt))
    a("s_nop 1")
    for i in range(16): a("v_mov_b32 v%d, v%d" % (ACC + i, ACC + 16 + i))
    a("K2_SENT:")
    a("s_lshl_b32 s20, s16, 2\ns_add_u32 s20, s20, %d\nv_mov_b32 v12, s20\nv_mov_b32 v13, 1\ns_waitcnt lgkmcnt(0)\nds_write_b32 v12, v13" % K2_FL)
    a("v_xor_b32 v15, 16, v12\nv_mov_b32 v13, %d" % (K2_FL + 32))
    a("v_lshlrev_b32 v12, 1, v2\nv_add_u32 v12, v12, v5")
    a("s_lshl_b32 s20, s18, 7\ns_sub_u32 s20, 159, s20\nv_sub_u32 v7, s20, v12")
    a("v_lshrrev_b32 v8, 2, v7\nv_and_b32 v8, 3, v8\nv_xor_b32 v8, s17, v8\nv_lshlrev_b32 v8, 4, v8")
    a("v_lshlrev_b32 v7, 6, v7\nv_xor_b32 v9, 1, v4\nv_lshlrev_b32 v9, 3, v9\nv_add3_u32 v7, v7, v8, v9\nv_add_u32 v7, %d, v7" % K2_U)
    U_, O, X_, S_ = 64, 48, 72, 80
    for tt in range(4): a("ds_read_b64 %s, v7 offset:%d" % (vr(U_ + 2 * tt, 2), 2048 * (3 - tt)))
    a("s_lshl_b32 s20, s18, 7\nv_add_u32 v8, s20, v12")
    a("v_lshrrev_b32 v9, 2, v8\nv_and_b32 v9, 3, v9\nv_xor_b32 v9, s17, v9\nv_lshlrev_b32 v9, 4, v9")
    a("v_lshlrev_b32 v8, 6, v8\nv_lshlrev_b32 v10, 3, v4\nv_add3_u32 v8, v8, v9, v10\nv_add_u32 v8, %d, v8" % K2_X)
    a("v_lshlrev_b32 v9, 4, v2\nv_lshlrev_b32 v10, 2, v3\ns_lshl_b32 s20, s18, 10\nv_add3_u32 v9, v9, v10, s20")
    a("v_lshlrev_b32 v10, 2, v9\nv_add_u32 v10, %d, v10" % K2_ST)
    a("s_and_b32 s20, s19, 7\nv_and_b32 v9, 7, v2\nv_xor_b32 v9, s20, v9\nv_lshlrev_b32 v9, 5, v9\nv_lshl_add_u32 v9, v3, 3, v9")
    a("v_lshrrev_b32 v11, 3, v2\nv_lshl_add_u32 v9, v11, 18, v9")
    a("s_lshl_b32 s20, s19, 8\ns_lshl_b32 s34, s18, 21\ns_add_u32 s34, s34, s20\ns_add_u32 s34, s34, 0x%x" % HT)
    a("s_lshl_b32 s20, s21, 16\ns_and_b32 s21, s21, 0xffff0000\ns_bitcmp0_b32 s15, 0\ns_cselect_b32 s21, s20, s21")
    a("s_mov_b32 s33, 0xffff0000")
    a("s_waitcnt lgkmcnt(0)")
    W = 96
    for tt in range(4):
        uf = W + 16 * tt; y = ACC + 4 * tt
        a("v_and_b32 v%d, s33, v%d\nv_lshlrev_b32 v%d, 16, v%d" % (uf + 0, U_ + 2 * tt + 1, uf + 1, U_ + 2 * tt + 1))
        a("v_and_b32 v%d, s33, v%d\nv_lshlrev_b32 v%d, 16, v%d" % (uf + 2, U_ + 2 * tt, uf + 3, U_ + 2 * tt))
        for r in range(4): a("v_fma_f32 v%d, v%d, s21, v%d" % (y + r, uf + r, y + r))
    a("K2_POLL:")
    a("ds_read_b32 v72, v15\nds_read_b128 v[76:79], v13\ns_waitcnt lgkmcnt(0)")
    a("v_and_b32 v72, v72, v76\nv_and_b32 v77, v77, v78\nv_and_b32 v72, v72, v79\nv_and_b32 v72, v72, v77\ns_nop 0\nv_readfirstlane_b32 s20, v72")
    a("s_nop 0\ns_cmp_eq_u32 s20, 1\ns_cbranch_scc1 K2_GO\ns_sleep 1\ns_branch K2_POLL")
    a("K2_GO:")
    stamp(a, 5)
    if STAMP: a("s_waitcnt lgkmcnt(0)")
    for tt in range(4):
        a("ds_read_b128 %s, v10 offset:%d" % (vr(S_ + 4 * tt, 4), 1024 * tt))
        a("ds_read_b64 %s, v8 offset:%d" % (vr(X_ + 2 * tt, 2), 2048 * tt))
        a("ds_read_b128 %s, v14 offset:%d" % (vr(O + 4 * tt, 4), 1024 * tt))
    for tt in range(4):
        a("s_waitcnt lgkmcnt(%d)" % (3 * (3 - tt)))
        y = ACC + 4 * tt; w = W + 16 * tt
        xf, mf, rf = w + 4, w + 8, w + 12
        for r in range(4): a("v_and_b32 v%d, s33, v%d" % (rf + r, S_ + 4 * tt + r))
        for r in range(4): a("v_rcp_f32 v%d, v%d" % (rf + r, rf + r))
        for r in range(4): a("v_add_f32 v%d, v%d, v%d" % (y + r, y + r, O + 4 * tt + r))
        a("v_lshlrev_b32 v%d, 16, v%d\nv_and_b32 v%d, s33, v%d" % (xf + 0, X_ + 2 * tt, xf + 1, X_ + 2 * tt))
        a("v_lshlrev_b32 v%d, 16, v%d\nv_and_b32 v%d, s33, v%d" % (xf + 2, X_ + 2 * tt + 1, xf + 3, X_ + 2 * tt + 1))
        for r in range(4): a("v_lshlrev_b32 v%d, 16, v%d" % (mf + r, S_ + 4 * tt + r))
        for r in range(4): a("v_sub_f32 v%d, v%d, v%d" % (mf + r, xf + r, mf + r))
        for r in range(4): a("v_mul_f32 v%d, v%d, v%d" % (mf + r, mf + r, rf + r))
        for r in range(4): a("v_fma_f32 v%d, v%d, v%d, v%d" % (y + r, mf + r, y + r, xf + r))
        a("v_cvt_pk_bf16_f32 v%d, v%d, v%d\nv_cvt_pk_bf16_f32 v%d, v%d, v%d" % (w, y, y + 1, w + 1, y + 2, y + 3))
        a("buffer_store_dwordx2 %s, v9, s[28:31], s34 offen%s\ns_add_u32 s34, s34, 0x80000" % (vr(w, 2), sflag("k2")))
    stamp(a, 6)
    if STAMP: a("s_waitcnt vmcnt(0)")
    stamp(a, 7)
    stamp_store(a, 1, 16, 12, 12)
    a("K2_END:\ns_endpgm")

if __name__ == "__main__":
    STAMP = "s_memrealtime" if "--stamp" in sys.argv else ("s_memtime" if "--stampc" in sys.argv else False)
    a = Asm()
    gen_k1(a)
    gen_k2(a, prefetch="--nopf" not in sys.argv)
    sys.stdout.write(a.text())
```

```python
from gen import *
import gen

LOG2E = 1.4426950408889634

K3_SUB = 22528; K3_STG = 2 * K3_SUB; K3_R = 3
K3_TAB = 147456
K3_CS = K3_TAB + 1024
K3_LDS = K3_CS + 896
K3_NST = 16

def lane_parts(a):
    a("v_and_b32 v1, 63, v0\nv_lshrrev_b32 v2, 4, v1\nv_bfe_u32 v3, v1, 2, 2\nv_and_b32 v4, 3, v1\nv_and_b32 v5, 1, v2")

def gemm_loop(a, name, NA, NB, FS, ACC, rdA, rdB, addr_regs, R, NST, extras=None, bar_at=4, slot0=0):
    seq = [(i, s) for s in range(NB) for i in range(NA)] if (name + 'ordA') not in OPT else [(i, s) for i in range(NA) for s in range(NB)]
    fifo = []
    def reads(st, sub):
        out = []; seen = set()
        for (i, s) in seq:
            if ("B", s) not in seen:
                seen.add(("B", s)); out += [((st, "B", s), r) for r in rdB(FS[st] + 4 * s, sub, s)]
            if ("A", i) not in seen:
                seen.add(("A", i)); out += [((st, "A", i), r) for r in rdA(FS[st] + 4 * NB + 4 * i, sub, i)]
        return out
    def issue(rd):
        a(rd[1]); fifo.append(rd[0])
    def need(ids):
        idx = [k for k, f in enumerate(fifo) if f in ids]
        if idx:
            n = len(fifo) - 1 - max(idx)
            a("s_waitcnt lgkmcnt(%d)" % min(n, 15))
            del fifo[:len(fifo) - min(n, 15)]
    def phase(st, rds, first=False, bar=False, pre=(), tail=()):
        rds = list(rds); pre = list(pre); tail = list(tail); n = len(seq)
        for m, (i, s) in enumerate(seq):
            need([(st, "A", i), (st, "B", s)])
            d = vr(ACC + 4 * NB * i + 4 * s, 4)
            a("v_mfma_f32_16x16x32_bf16 %s, %s, %s, %s" % (d, vr(FS[st] + 4 * NB + 4 * i, 4), vr(FS[st] + 4 * s, 4), "0" if first else d))
            if bar and m < bar_at:
                k = -(-len(pre) // (bar_at - m))
                for x in pre[:k]: a(x)
                pre = pre[k:]
                if m == bar_at - 1:
                    a("s_waitcnt lgkmcnt(0)\ns_barrier"); del fifo[:]
                continue
            k = 1 if len(rds) <= n - m else 2
            if not rds and tail: a(tail.pop(0))
            for rd in rds[:k]: issue(rd)
            rds = rds[k:]
        assert not rds and not pre and not tail
    adv = ["s_add_u32 s34, s34, 1", "s_cmp_eq_u32 s34, %d" % R, "s_cselect_b32 s35, s31, s30", "s_cselect_b32 s34, 0, s34"]
    adv = [adv[0] + "\n" + adv[1] + "\n" + adv[2] + "\n" + adv[3]] + ["v_add_u32 v%d, s35, v%d" % (v, v) for v in addr_regs]
    extras = extras or {}
    npeel = max([0] + list(extras)) + 1
    a("s_mov_b32 s34, %d\ns_mov_b32 s32, %d" % (slot0, npeel))
    for rd in reads(0, 0): issue(rd)
    start = list(fifo)
    for j in range(npeel):
        phase(0, reads(1, 1), first=(j == 0), tail=extras.get(j, ()))
        phase(1, reads(0, 0), bar=True, pre=adv)
        assert fifo == start
    a("%s_CLOOP:" % name)
    phase(0, reads(1, 1))
    phase(1, reads(0, 0), bar=True, pre=adv)
    assert fifo == start
    a("s_add_u32 s32, s32, 1\ns_cmp_lt_u32 s32, %d\ns_cbranch_scc1 %s_CLOOP" % (NST - 1, name))
    phase(0, reads(1, 1))
    phase(1, [])

def gen_k3(a):
    a.begin("k3_kernel", 256, 512, K3_LDS, vgpr=224, sgpr=96)
    a("s_cmp_ge_u32 s2, 256\ns_cbranch_scc1 K4_END")
    for i in range(8): stamp(a, i)
    a("s_load_dwordx2 s[4:5], s[0:1], 56\ns_load_dwordx2 s[6:7], s[0:1], 72\ns_load_dwordx2 s[12:13], s[0:1], 88")
    a("s_and_b32 s8, s2, 7\ns_lshr_b32 s9, s2, 3")
    if "mapB" in OPT:
        a("s_lshr_b32 s14, s8, 1\ns_lshl_b32 s14, s14, 2\ns_lshr_b32 s15, s9, 3\ns_add_u32 s14, s14, s15")
        a("s_and_b32 s15, s8, 1\ns_lshl_b32 s15, s15, 3\ns_and_b32 s9, s9, 7\ns_add_u32 s15, s15, s9")
    else:
        a("s_and_b32 s14, s8, 1\ns_lshl_b32 s14, s14, 3\ns_lshr_b32 s15, s9, 2\ns_add_u32 s14, s14, s15")
        a("s_lshr_b32 s15, s8, 1\ns_lshl_b32 s15, s15, 2\ns_and_b32 s9, s9, 3\ns_add_u32 s15, s15, s9")
    a("v_lshrrev_b32 v6, 6, v0")
    lane_parts(a)
    a("v_readfirstlane_b32 s16, v6")
    a("s_mov_b32 s30, %d\ns_mov_b32 s31, %d" % (K3_STG, -(K3_R - 1) * K3_STG & 0xffffffff))
    a("s_cmp_lt_u32 s16, 4\ns_cbranch_scc1 K3_CONS")
    if "e3" in OPT: a("s_endpgm")
    a("s_sub_u32 s17, s16, 4\ns_and_b32 s18, s17, 1")
    a("v_lshlrev_b32 v8, 4, v1")
    a("s_and_b32 s52, s15, 12\ns_and_b32 s53, s15, 3")
    a("s_mul_i32 s27, s18, %d" % K3_SUB)
    a("s_waitcnt lgkmcnt(0)")
    a.srd(44, 12, WS_BYTES)
    def mkstage(n, step):
        cnt = [0]
        def stage():
            a("s_mul_i32 s24, s52, %d\ns_add_u32 s24, s24, s26\ns_mov_b32 m0, s28" % (0 if "e2" in OPT else step))
            cnt[0] += 1
            for i in range(n if not ("e1" in OPT and cnt[0] > 2) else 0):
                if i and i % 4 == 0: a("s_add_u32 m0, m0, 4096\ns_add_u32 s24, s24, 4096")
                if i == 0: a("s_add_u32 s52, s52, 1")
                a("buffer_load_dwordx4 v8, s[44:47], s24 offen offset:%d lds" % (1024 * (i % 4)))
            a("s_and_b32 s52, s52, 15")
            a("s_add_u32 s28, s28, %d\ns_cmp_ge_u32 s28, s29\ns_cselect_b32 s28, s27, s28" % K3_STG)
        return stage
    a("s_cmp_lt_u32 s17, 2\ns_cbranch_scc1 K3_XL")
    a("s_add_u32 s27, s27, 8192\ns_mov_b32 s28, s27\ns_add_u32 s29, s27, %d" % (K3_R * K3_STG))
    if "w1p" in OPT:
        a("s_mul_i32 s26, s15, %d\ns_mul_i32 s21, s18, 14336\ns_add_u32 s26, s26, s21\ns_add_u32 s26, s26, 0x%x" % (1024 * 448, W1P))
        stage = mkstage(14, 28672)
    else:
        a.srd(40, 4, 7340032)
        a("s_mul_i32 s20, s15, 448\ns_mul_i32 s21, s18, %d\ns_add_u32 s20, s20, s21\ns_mov_b32 s22, 0x924924a" % (32 * 7168))
        def wpiece(v, pi):
            a("v_add_u32 v6, %d, v1\nv_mul_hi_u32 v7, v6, s22" % (64 * pi))
            a("v_mul_u32_u24 v9, 28, v7\nv_sub_u32 v6, v6, v9")
            a("v_lshrrev_b32 v9, 1, v7\nv_and_b32 v9, 2, v9\nv_xor_b32 v6, v6, v9\nv_lshlrev_b32 v6, 4, v6")
            a("v_mul_u32_u24 v7, 7168, v7\nv_add3_u32 v%d, v7, v6, s20" % v)
        first = [True]
        def stage():
            a("s_mul_i32 s24, s52, %d\ns_mov_b32 m0, s28\ns_add_u32 s52, s52, 1" % (64 * 7168))
            for i in range(14):
                if first[0]: wpiece(10 + i, i)
                if i: a("s_add_u32 m0, m0, 1024\ns_nop 0")
                a("buffer_load_dwordx4 v%d, s[40:43], s24 offen lds" % (10 + i))
            first[0] = False
            a("s_and_b32 s52, s52, 15")
            a("s_add_u32 s28, s28, %d\ns_cmp_ge_u32 s28, s29\ns_cselect_b32 s28, s27, s28" % K3_STG)
    stage(); stage()
    a("s_mov_b32 s32, 0")
    stamp(a, 1)
    if "blog" in OPT: a("v_mov_b32 v30, 0\nv_mov_b32 v32, 0")
    a("K3_WLOOP:")
    if "blog" in OPT:
        a("s_waitcnt vmcnt(14)\ns_memtime s[60:61]\ns_waitcnt lgkmcnt(0)\ns_sub_u32 s60, s60, s70\nv_mov_b32 v31, s60\nv_cmp_eq_u32 vcc, s32, v1\ns_nop 1\nv_cndmask_b32 v32, v32, v31, vcc")
    a("s_waitcnt vmcnt(14)\ns_barrier")
    if "blog" in OPT:
        a("s_memtime s[60:61]\ns_waitcnt lgkmcnt(0)\ns_sub_u32 s60, s60, s70\nv_mov_b32 v31, s60\nv_cmp_eq_u32 vcc, s32, v1\ns_nop 1\nv_cndmask_b32 v30, v30, v31, vcc")
    stage()
    a("s_add_u32 s32, s32, 1\ns_cmp_lt_u32 s32, %d\ns_cbranch_scc1 K3_WLOOP" % (K3_NST - 2))
    if "blog" in OPT:
        a("s_lshl_b32 s60, s2, 9\ns_add_u32 s60, s60, 0x%x\nv_lshlrev_b32 v31, 2, v1\nv_add_u32 v31, s60, v31" % (STB + 0x800000))
        a("global_store_dword v31, v30, s[12:13]\nglobal_store_dword v31, v32, s[12:13] offset:256\ns_waitcnt vmcnt(0)")
    a("s_waitcnt vmcnt(14)\ns_barrier\ns_branch K3_LTAIL")
    a("K3_XL:")
    a("s_lshl_b32 s26, s14, 18\ns_lshl_b32 s21, s18, 13\ns_add_u32 s26, s26, s21\ns_add_u32 s26, s26, 0x%x" % HT)
    a("s_mov_b32 s28, s27\ns_add_u32 s29, s27, %d" % (K3_R * K3_STG))
    stage = mkstage(8, 16384)
    stage(); stage()
    a("v_lshrrev_b32 v20, 2, v1\nv_and_b32 v21, 7, v20\nv_lshlrev_b32 v21, 1, v21\ns_lshl_b32 s21, s17, 3\nv_add_u32 v22, s21, v4\nv_xor_b32 v21, v21, v22")
    a("v_lshlrev_b32 v21, 4, v21\nv_lshl_add_u32 v20, v20, 8, v21")
    a("s_cmp_eq_u32 s53, 3\ns_cselect_b32 s22, 0, s53\ns_mul_i32 s22, s22, %d\nv_add_u32 v20, s22, v20\nv_xor_b32 v19, 64, v20" % K3_STG)
    a("s_lshl_b32 s21, s14, 2\ns_lshl_b32 s22, s17, 1\ns_add_u32 s21, s21, s22\ns_lshl_b32 s21, s21, 4\ns_add_u32 s21, s21, s15\ns_lshl_b32 s21, s21, 8\ns_add_u32 s21, s21, 0x%x" % XSP)
    a("v_lshlrev_b32 v21, 6, v2\nv_lshlrev_b32 v22, 4, v4\nv_add3_u32 v21, v21, v22, s21\nv_add_u32 v18, 4096, v21")
    a("s_lshl_b32 s21, s14, 8\ns_add_u32 s21, s21, 0x%x\nv_mov_b32 v22, s21\nv_mov_b32 v23, 1\ns_mov_b32 s33, 0xffff0000" % CNT)
    NPIECE = 7
    a("s_add_u32 s54, s53, %d" % (NPIECE + 1))
    a("s_cmp_eq_u32 s17, 0\ns_cselect_b32 s54, s54, 99")
    a("s_mov_b32 s32, 0")
    stamp(a, 1)
    a("K3_LLOOP:")
    a("s_waitcnt vmcnt(8)\ns_barrier")
    a("s_cmp_eq_u32 s32, s54\ns_cbranch_scc0 K3_NOSIG\ns_mov_b64 exec, 1")
    a("buffer_atomic_add v23, v22, s[44:47], 0 offen\ns_mov_b64 exec, -1")
    a("K3_NOSIG:")
    stage()
    pieces = []
    b = Asm()
    for p in range(2):
        for i in range(4):
            b("ds_read_b128 %s, v%d offset:%d" % (vr(24 + 16 * p + 4 * i, 4), 20 - p, (i >> 1) * K3_SUB + (i & 1) * 4096))
    b("s_waitcnt lgkmcnt(0)")
    pieces.append(b)
    for p in range(2):
        R = 64 + 16 * p; U = 56
        for i in range(4):
            if i % 2 == 0:
                b = Asm(); pieces.append(b)
            dst = R if i == 0 else U
            for d in range(4):
                b("v_lshlrev_b32 v%d, 16, v%d\nv_and_b32 v%d, s33, v%d" % (dst + 2 * d, 24 + 16 * p + 4 * i + d, dst + 2 * d + 1, 24 + 16 * p + 4 * i + d))
            for d in range(4):
                if i == 0: b("v_pk_mul_f32 %s, %s, %s" % (vr(R + 8 + 2 * d, 2), vr(R + 2 * d, 2), vr(R + 2 * d, 2)))
                else:
                    b("v_pk_add_f32 %s, %s, %s" % (vr(R + 2 * d, 2), vr(R + 2 * d, 2), vr(U + 2 * d, 2)))
                    b("v_pk_fma_f32 %s, %s, %s, %s" % (vr(R + 8 + 2 * d, 2), vr(U + 2 * d, 2), vr(U + 2 * d, 2), vr(R + 8 + 2 * d, 2)))
    b = Asm(); pieces.append(b)
    for p in range(2):
        R = 64 + 16 * p
        for i in range(8): b("v_permlane32_swap_b32 v%d, v%d" % (R + i, R + 8 + i))
        for i in range(8): b("v_add_f32 v%d, v%d, v%d" % (R + i, R + i, R + 8 + i))
    b = Asm(); pieces.append(b)
    for p in range(2):
        R = 64 + 16 * p
        for i in range(4): b("v_permlane16_swap_b32 v%d, v%d" % (R + i, R + 4 + i))
        for i in range(4): b("v_add_f32 v%d, v%d, v%d" % (R + i, R + i, R + 4 + i))
    for sh in (8, 4):
        for p in range(2):
            R = 64 + 16 * p
            for i in range(4):
                b("v_add_f32_dpp v%d, v%d, v%d row_ror:%d row_mask:0xf bank_mask:0xf" % (R + i, R + i, R + i, sh))
    b("s_mov_b32 exec_lo, 0x000f000f\ns_mov_b32 exec_hi, 0x000f000f")
    b("buffer_store_dwordx4 v[64:67], v21, s[44:47], 0 offen sc1\nbuffer_store_dwordx4 v[80:83], v18, s[44:47], 0 offen sc1")
    b("s_mov_b64 exec, -1")
    assert len(pieces) == NPIECE
    a("s_sub_u32 s55, s32, s53\ns_cmp_lt_u32 s55, %d\ns_cbranch_scc0 K3_NOST" % NPIECE)
    for k, b in enumerate(pieces):
        a("K3_ST%d:" % k)
        if k + 1 < NPIECE: a("s_cmp_eq_u32 s55, %d\ns_cbranch_scc0 K3_ST%d" % (k, k + 1))
        a.lines += b.lines
        if k + 1 < NPIECE: a("s_branch K3_NOST")
    a("K3_NOST:")
    a("s_add_u32 s32, s32, 1\ns_cmp_lt_u32 s32, %d\ns_cbranch_scc1 K3_LLOOP" % (K3_NST - 2))
    a("s_waitcnt vmcnt(8)\ns_barrier")
    a("K3_LTAIL:")
    a("s_lshl_b32 s21, s14, 8\ns_add_u32 s21, s21, 0x%x\nv_mov_b32 v7, s21\ns_mov_b32 s23, 0" % CNT)
    a("K3_POLL:")
    a("buffer_load_dword v21, v7, s[44:47], 0 offen sc1\ns_waitcnt vmcnt(0)")
    a("v_readfirstlane_b32 s21, v21\ns_nop 0\ns_cmp_ge_u32 s21, 16\ns_cbranch_scc1 K3_GOT\ns_sleep 1\ns_add_u32 s23, s23, 1\ns_cmp_lt_u32 s23, 0x400000\ns_cbranch_scc1 K3_POLL")
    a("K3_GOT:")
    a("s_lshl_b32 s21, s14, 2\ns_add_u32 s21, s21, s17\ns_lshl_b32 s21, s21, 12\ns_add_u32 s21, s21, 0x%x\nv_lshlrev_b32 v6, 2, v1" % XSP)
    for p in range(16):
        a("buffer_load_dword v%d, v6, s[44:47], s21 offen offset:%d sc1" % (40 + p, 256 * p))
    a("s_mul_i32 s21, s15, 896\ns_mul_i32 s22, s17, 224\ns_add_u32 s21, s21, s22\ns_add_u32 s21, s21, 0x%x" % CSP)
    for p in range(16):
        a("buffer_load_dword v%d, v6, s[44:47], s21 offen\ns_add_u32 s21, s21, 14336" % (24 + p))
    a("s_barrier")
    NPF = 0
    a("s_mul_i32 s22, s17, 224\ns_add_u32 s22, s22, %d\nv_add_u32 v6, s22, v6" % K3_CS)
    a("v_lshlrev_b32 v22, 3, v3\nv_add_u32 v22, v22, v4\nv_lshlrev_b32 v23, 2, v5\nv_add_u32 v22, v22, v23\nv_lshlrev_b32 v22, 3, v22")
    a("s_lshl_b32 s22, s17, 8\ns_add_u32 s22, s22, %d\nv_add_u32 v22, s22, v22" % K3_TAB)
    a("s_waitcnt vmcnt(%d)" % (16 + NPF))
    for st in (8, 4, 2, 1):
        for p in range(st): a("v_add_f32 v%d, v%d, v%d" % (40 + p, 40 + p, 40 + st + p))
    a("v_mov_b32 v41, v40\ns_nop 1\nv_permlane32_swap_b32 v40, v41")
    stats_finish(a, 40, 41, 42, 43, 1024)
    a("v_and_b32 v45, 0xffff0000, v40\nv_rcp_f32 v45, v45\nv_lshlrev_b32 v44, 16, v40\nv_xor_b32 v44, 0x80000000, v44")
    a("ds_write_b64 v22, v[44:45]")
    a("s_waitcnt vmcnt(%d)" % NPF)
    for st in (8, 4, 2, 1):
        for p in range(st): a("v_add_f32 v%d, v%d, v%d" % (24 + p, 24 + p, 24 + st + p))
    a("s_mov_b32 exec_hi, 0x00ffffff")
    a("ds_write_b32 v6, v24")
    a("s_mov_b64 exec, -1")
    stamp(a, 2)
    k4_loader(a)
    a("K3_CONS:")
    a("s_setprio 2")
    a("s_cmp_eq_u32 s16, 0\ns_cbranch_scc0 K3_NOCPF")
    code_prefetch(a, "K4_END", 32, 222, 216, 1)
    a("K3_NOCPF:")
    a("s_and_b32 s17, s16, 1\ns_lshr_b32 s18, s16, 1")
    XA, WA, WB, WC = 8, 12, 13, 14
    a("v_lshlrev_b32 v6, 2, v2\nv_add_u32 v6, v6, v3\nv_and_b32 v7, 7, v6\nv_lshlrev_b32 v15, 3, v4\nv_lshl_add_u32 v6, v6, 8, v15")
    a("s_lshl_b32 s21, s17, 2\nv_xor_b32 v7, s21, v7\nv_lshl_add_u32 v%d, v7, 5, v6" % XA)
    for i in range(1, 4): a("v_xor_b32 v%d, %d, v%d" % (XA + i, 32 * i, XA))
    a("v_lshlrev_b32 v7, 5, v5")
    a("v_lshlrev_b32 v6, 2, v2\nv_add_u32 v6, v6, v3\nv_mul_u32_u24 v6, 448, v6\nv_add_u32 v6, v6, v15\nv_add_u32 v6, 8192, v6")
    a("s_lshl_b32 s21, s18, 8\nv_add_u32 v15, s21, v6\nv_add_u32 v%d, v15, v7\nv_sub_u32 v%d, v15, v7" % (WA, WB))
    a("s_add_u32 s21, s18, 6\nv_xor_b32 v15, s21, v5\nv_lshlrev_b32 v15, 5, v15\nv_add_u32 v%d, v6, v15" % WC)
    FS = [16, 60]; ACC = 104
    def rdB(dst, sub, i):
        return ["ds_read_b64_tr_b16 %s, v%d offset:%d" % (vr(dst + 2 * h, 2), XA + i, sub * K3_SUB + h * 4096) for h in range(2)]
    def rdA(dst, sub, i):
        if i < 6: return ["ds_read_b64_tr_b16 %s, v%d offset:%d" % (vr(dst + 2 * h, 2), WA + (i & 1), sub * K3_SUB + h * 7168 + 32 * i) for h in range(2)]
        return ["ds_read_b64_tr_b16 %s, v%d offset:%d" % (vr(dst + 2 * h, 2), WC, sub * K3_SUB + h * 7168) for h in range(2)]
    a("s_waitcnt lgkmcnt(0)\ns_barrier")
    stamp(a, 1)
    if gen.STAMP: a("s_waitcnt lgkmcnt(0)")
    gemm_loop(a, "K3", 7, 4, FS, ACC, rdA, rdB, list(range(XA, WC + 1)), K3_R, K3_NST)
    stamp(a, 2)
    a("s_add_u32 s8, s12, 0x%x\ns_addc_u32 s9, s13, 0" % H1)
    a.srd(36, 8, H1_BYTES)
    a("v_and_b32 v6, 15, v1\nv_lshlrev_b32 v6, 3, v6\ns_lshl_b32 s21, s17, 9\ns_add_u32 s21, s21, %d\nv_add_u32 v6, s21, v6" % K3_TAB)
    a("v_lshlrev_b32 v7, 4, v2\ns_lshl_b32 s21, s18, 9\ns_add_u32 s21, s21, %d\nv_add_u32 v8, s21, v7" % K3_CS)
    a("s_lshl_b32 s21, s18, 6\ns_add_u32 s21, s21, %d\nv_add_u32 v9, s21, v7" % (K3_CS + 384))
    a("s_lshl_b32 s21, s14, 1\ns_lshr_b32 s22, s15, 3\ns_add_u32 s21, s21, s22\ns_lshl_b32 s23, s21, 10\ns_add_u32 s23, s23, 0x%x" % CNT2)
    a("v_mov_b32 v220, s23\nv_mov_b32 v221, 1")
    a("s_mul_i32 s21, s21, 56\ns_lshl_b32 s21, s21, 13\ns_lshl_b32 s22, s17, 12\ns_add_u32 s21, s21, s22\ns_and_b32 s23, s15, 7")
    a("s_lshl_b32 s22, s23, 1\ns_add_u32 s22, s22, s18\ns_lshl_b32 s22, s22, 13\ns_add_u32 s22, s22, s21\nv_lshlrev_b32 v10, 4, v1\nv_add_u32 v11, s22, v10")
    a("s_add_u32 s22, s23, 48\ns_lshl_b32 s22, s22, 13\ns_add_u32 s22, s22, s21\ns_lshl_b32 s23, s18, 3\ns_add_u32 s22, s22, s23\nv_add_u32 v13, s22, v10")
    a.srd(44, 12, WS_BYTES)
    a("s_mov_b32 s24, 0x%x\ns_mov_b32 s25, s24\ns_mov_b32 s26, 1.0\ns_mov_b32 s27, 1.0" % f32bits(-LOG2E))
    a("s_mov_b32 s28, 131072\ns_mov_b32 s29, 262144")
    a("s_waitcnt lgkmcnt(0)\ns_barrier")
    stamp(a, 3)
    RT = 16; CSR = 24
    for s in range(4): a("ds_read_b64 %s, v6 offset:%d" % (vr(RT + 2 * s, 2), 128 * s))
    for i in range(6): a("ds_read_b128 %s, v8 offset:%d" % (vr(CSR + 4 * i, 4), 64 * i))
    a("ds_read_b128 %s, v9" % vr(CSR + 24, 4))
    a("s_waitcnt lgkmcnt(0)")
    T = 56; PK = 72
    def silu2(tiles):
        zs = [(ACC + 16 * i + 4 * s, vr(RT + 2 * s, 2), CSR + 4 * i, T + 4 * n, dst) for n, (i, s, dst) in enumerate(tiles)]
        for z, rt, cs, t, dst in zs:
            for p in range(2): a("v_pk_fma_f32 %s, %s, %s, %s op_sel_hi:[1,0,1]" % (vr(z + 2 * p, 2), vr(cs + 2 * p, 2), rt, vr(z + 2 * p, 2)))
        for z, rt, cs, t, dst in zs:
            for p in range(2): a("v_pk_mul_f32 %s, %s, %s op_sel:[0,1] op_sel_hi:[1,1]" % (vr(z + 2 * p, 2), vr(z + 2 * p, 2), rt))
        for z, rt, cs, t, dst in zs:
            for p in range(2): a("v_pk_mul_f32 %s, %s, s[24:25]" % (vr(t + 2 * p, 2), vr(z + 2 * p, 2)))
        for z, rt, cs, t, dst in zs:
            for r in range(4): a("v_exp_f32 v%d, v%d" % (t + r, t + r))
        for z, rt, cs, t, dst in zs:
            for p in range(2): a("v_pk_add_f32 %s, %s, s[26:27]" % (vr(t + 2 * p, 2), vr(t + 2 * p, 2)))
        for z, rt, cs, t, dst in zs:
            for r in range(4): a("v_rcp_f32 v%d, v%d" % (t + r, t + r))
        for z, rt, cs, t, dst in zs:
            for p in range(2): a("v_pk_mul_f32 %s, %s, %s" % (vr(z + 2 * p, 2), vr(z + 2 * p, 2), vr(t + 2 * p, 2)))
        for z, rt, cs, t, dst in zs:
            a("v_cvt_pk_bf16_f32 v%d, v%d, v%d\nv_cvt_pk_bf16_f32 v%d, v%d, v%d" % (dst, z, z + 1, dst + 1, z + 2, z + 3))
    a("v_mov_b32 v218, v11\nv_mov_b32 v219, v13")
    a("s_mov_b32 s56, s36\ns_mov_b32 s57, s37\ns_mov_b32 s58, s38\ns_mov_b32 s59, 0x00020000\ns_mov_b32 s60, 131072\ns_mov_b32 s61, 262144")
    later = []
    held = []
    for pr in range(3):
        for s in range(4):
            d = (PK + 16 * pr + 4 * s) if pr < 2 else (104 + 4 * s)
            silu2([(2 * pr, s, d), (2 * pr + 1, s, d + 2)])
            st = "buffer_store_dwordx4 %s, v218, s[56:59], %s offen offset:%d%s" % (vr(d, 4), ["0", "s60"][pr & 1], 1024 * s, sflag("k3"))
            if pr == 0: a(st)
            if pr == 1: held.append(st)
            if (pr, s) == (1, 3):
                signal(a, 0, 0)
                for st in held: a(st)
    for s in (0, 2):
        silu2([(6, s, 120 + 2 * s), (6, s + 1, 122 + 2 * s)])
    for i in range(24): a("v_mov_b32 v%d, v%d" % (192 + i, 104 + i))
    for s in range(4):
        later.append("buffer_store_dwordx4 %s, v218, s[56:59], s61 offen offset:%d%s" % (vr(192 + 4 * s, 4), 1024 * s, sflag("k3")))
    for s in range(4):
        later.append("buffer_store_dwordx2 %s, v219, s[56:59], 0 offen offset:%d%s" % (vr(208 + 2 * s, 2), 1024 * s, sflag("k3")))
    global LATER
    LATER = later
    stamp(a, 4)
    k4_consumer(a)

K4_SUB = 16384; K4_STG = 32768; K4_R = 3 if '--r3' in sys.argv else 4
K4_S0 = 2
SIG0 = (1, 3) if '--sig13' in sys.argv else ((2, 1) if '--sig21' in sys.argv else (2, 3))
SLEEP0 = 20
K4_RES = K4_STG * K4_R
K4_LDS = K4_RES + 16384
K4_NST = 28

def signal_txt(vm, g):
    return ("s_waitcnt vmcnt(%d)\ns_mov_b64 exec, 1\n" % vm +
            "buffer_atomic_add v221, v220, s[44:47], 0 offen offset:%d\ns_mov_b64 exec, -1" % (256 * g))
def signal(a, vm, g):
    a(signal_txt(vm, g))

def k4_ids(a):
    a("s_and_b32 s8, s2, 7\ns_lshr_b32 s9, s2, 3")
    a("s_and_b32 s19, s8, 1")
    a("s_lshr_b32 s14, s8, 1\ns_lshl_b32 s14, s14, 2\ns_and_b32 s15, s9, 3\ns_add_u32 s14, s14, s15")
    a("s_lshr_b32 s15, s9, 2")
    a("s_mov_b32 s30, %d\ns_mov_b32 s31, %d" % (K4_STG, -(K4_R - 1) * K4_STG & 0xffffffff))

def k4_loader(a):
    k4_ids(a)
    if "k4e3" in OPT: a("s_endpgm")
    a("s_sub_u32 s17, s16, 4\ns_lshr_b32 s18, s17, 1\ns_and_b32 s20, s17, 1")
    a("v_lshlrev_b32 v8, 4, v1")
    a("s_mul_i32 s21, s14, 112\ns_mul_i32 s22, s19, 56\ns_add_u32 s22, s22, s18\ns_add_u32 s21, s21, s22\ns_lshl_b32 s21, s21, 13\ns_add_u32 s21, s21, 0x%x" % H1)
    a("s_mul_i32 s23, s15, 112\ns_add_u32 s23, s23, s22\ns_lshl_b32 s23, s23, 13\ns_add_u32 s23, s23, 0x%x" % W2P)
    a("s_cmp_eq_u32 s20, 0\ns_cselect_b32 s24, s21, s23")
    a("s_lshl_b32 s21, s15, 7\ns_lshl_b32 s22, s19, 6\ns_add_u32 s21, s21, s22\ns_lshl_b32 s22, s17, 4\ns_add_u32 s21, s21, s22\ns_lshl_b32 s21, s21, 8")
    a("s_lshl_b32 s22, s14, 18\ns_add_u32 s21, s21, s22\ns_add_u32 s25, s21, 0x%x" % HT)
    a("s_lshl_b32 s27, s17, 13\ns_add_u32 s28, s27, %d\ns_add_u32 s29, s27, %d" % (K4_S0 * K4_STG, K4_R * K4_STG))
    a.srd(36, 12, WS_BYTES)
    a("s_lshl_b32 s21, s14, 1\ns_add_u32 s21, s21, s19\ns_lshl_b32 s21, s21, 10\ns_add_u32 s21, s21, 0x%x\nv_mov_b32 v9, s21" % CNT2)
    a("s_mov_b32 s46, 0\ns_cmp_eq_u32 s20, 0\ns_cselect_b32 s47, 0, 99")
    npoll = [0]
    def poll():
        npoll[0] += 1; L = "K4_P%d" % npoll[0]
        a("s_cmp_eq_u32 s46, s47\ns_cbranch_scc0 %s_DONE\ns_mov_b32 s23, 0" % L)
        a("%s:" % L)
        a("buffer_load_dword v10, v9, s[36:39], 0 offen sc1\ns_waitcnt vmcnt(0)")
        a("v_readfirstlane_b32 s21, v10\ns_nop 0\ns_cmp_ge_u32 s21, 32\ns_cbranch_scc1 %s_GOT\ns_sleep 4\ns_add_u32 s23, s23, 1\ns_cmp_lt_u32 s23, 0x400000\ns_cbranch_scc1 %s" % (L, L))
        a("%s_GOT:" % L)
        if "dbg1" in OPT and npoll[0] == 1: stamp(a, 1)
        if "inv" in OPT: a("buffer_inv sc1")
        a("v_add_u32 v9, 256, v9\ns_add_u32 s47, s47, 8\ns_cmp_eq_u32 s47, 32\ns_cselect_b32 s47, 99, s47")
        a("%s_DONE:" % L)
        a("s_add_u32 s46, s46, 1")
    TOUCH = "touch" in OPT
    LDF = "" if "ldplain" in OPT else " sc1"
    TD = 3
    if TOUCH:
        a("s_mul_i32 s40, s17, 12\nv_add_u32 v9, s40, v1\nv_lshlrev_b32 v10, 7, v9")
        a("s_mul_i32 s40, s14, 112\ns_mul_i32 s41, s19, 56\ns_add_u32 s40, s40, s41\ns_lshl_b32 s40, s40, 13\ns_lshl_b32 s42, s15, 11\ns_add_u32 s40, s40, s42\ns_add_u32 s40, s40, 0x%x" % H1)
        a("s_mul_i32 s42, s15, 112\ns_add_u32 s42, s42, s41\ns_lshl_b32 s42, s42, 13\ns_and_b32 s43, s14, 3\ns_lshl_b32 s43, s43, 12\ns_add_u32 s42, s42, s43\ns_add_u32 s42, s42, 0x%x" % (W2P - 2048))
        a("v_add_u32 v11, s40, v10\nv_add_u32 v10, s42, v10\nv_cmp_gt_u32 vcc, 16, v9\ns_nop 1\nv_cndmask_b32 v10, v10, v11, vcc")
        a("s_mov_b32 s44, %d\ns_mov_b32 s45, %d" % (16384 * TD, 16384 * (K4_NST - 1)))
    def stage(check=True):
        if check: poll()
        else: a("s_add_u32 s46, s46, 1")
        a("s_mov_b32 m0, s28\ns_add_u32 s28, s28, %d" % K4_STG)
        for i in range(8):
            if i == 4: a("s_add_u32 m0, m0, 4096\ns_add_u32 s24, s24, 4096")
            a("buffer_load_dwordx4 v8, s[36:39], s24 offen offset:%d%s lds" % (1024 * (i % 4), LDF))
        a("s_add_u32 s24, s24, %d" % (12288 if "k4e2" not in OPT else -4096 & 0xffffffff))
        a("s_cmp_ge_u32 s28, s29\ns_cselect_b32 s28, s27, s28")
        if TOUCH:
            a("s_mov_b64 exec, 0xfff\nbuffer_load_dword v12, v10, s[36:39], s44 offen\ns_mov_b64 exec, -1\ns_add_u32 s44, s44, 16384\ns_min_u32 s44, s44, s45")
    NP = 9 if TOUCH else 8
    X1 = NP - 8
    a("s_lshl_b32 s21, s17, 12\ns_add_u32 m0, s21, %d\ns_nop 0" % K4_RES)
    for i in range(4): a("buffer_load_dwordx4 v8, s[36:39], s25 offen offset:%d lds" % (1024 * i))
    a("s_cmp_eq_u32 s20, 0\ns_cbranch_scc1 K4_HFIRST")
    stage(False)
    stage(False)
    a("s_waitcnt lgkmcnt(0)\ns_barrier\ns_branch K4_FIRST")
    a("K4_HFIRST:")
    a("s_waitcnt lgkmcnt(0)\ns_barrier")
    stamp(a, 3)
    a("s_sleep %d" % SLEEP0)
    stage()
    stage(False)
    a("K4_FIRST:")
    stamp(a, 4)
    a("s_waitcnt vmcnt(%d)\ns_barrier" % (NP + X1))
    stage(False)
    a("s_waitcnt vmcnt(%d)\ns_barrier" % (NP + X1))
    stage(False)
    LA = K4_R - 1
    a("s_waitcnt vmcnt(%d)\ns_barrier" % (NP + X1))
    stage(False)
    if LA == 3: stage(False)
    a("s_mov_b32 s32, 3")
    a("K4_LLOOP:")
    a("s_waitcnt vmcnt(%d)\ns_barrier" % (NP * (LA - 1) + X1))
    stage()
    a("s_add_u32 s32, s32, 1\ns_cmp_lt_u32 s32, %d\ns_cbranch_scc1 K4_LLOOP" % (K4_NST - LA))
    for k in range(LA - 1, -1, -1):
        a("s_waitcnt vmcnt(%d)\ns_barrier" % (NP * k + X1))
    stamp(a, 5)
    stamp_store(a, 2, 16, 8, 12)
    a("s_endpgm")

def k4_consumer(a):
    k4_ids(a)
    a("s_and_b32 s17, s16, 1\ns_lshr_b32 s18, s16, 1")
    HA, WK0, WK1, WS0, WS1 = 8, 9, 10, 11, 12
    a("v_lshlrev_b32 v%d, 4, v1\ns_lshl_b32 s21, s17, 12\ns_add_u32 s21, s21, %d\nv_add_u32 v%d, s21, v%d" % (HA, K4_S0 * K4_STG, HA, HA))
    a("v_lshlrev_b32 v6, 2, v2\nv_add_u32 v6, v6, v3\nv_and_b32 v7, 7, v6\nv_lshlrev_b32 v13, 3, v4\nv_lshl_add_u32 v6, v6, 8, v13\nv_lshl_add_u32 v14, v7, 5, v6")
    a("s_lshl_b32 s21, s18, 6\ns_lshl_b32 s22, s19, 7\ns_add_u32 s21, s21, s22\nv_xor_b32 v%d, s21, v14\nv_add_u32 v%d, %d, v%d" % (WK0, WK0, 8192 + K4_S0 * K4_STG, WK0))
    a("v_xor_b32 v%d, 32, v%d\nv_xor_b32 v%d, 128, v%d\nv_xor_b32 v%d, 160, v%d" % (WK1, WK0, WS0, WK0, WS1, WK0))
    FS = [16, 48]; ACC = 80
    def rdB(dst, sub, i):
        return ["ds_read_b128 %s, v%d offset:%d" % (vr(dst, 4), HA, sub * K4_SUB + 1024 * i)]
    def rdA(dst, sub, i):
        return ["ds_read_b64_tr_b16 %s, v%d offset:%d" % (vr(dst + 2 * h, 2), WK0 + i, sub * K4_SUB + h * 4096) for h in range(2)]
    a("s_waitcnt lgkmcnt(0)\ns_barrier")
    stamp(a, 5)
    if gen.STAMP: a("s_waitcnt lgkmcnt(0)")
    L = LATER
    ex = {1: L[0:1], 2: [signal_txt(1, 1)] + L[1:2], 3: L[2:3], 4: L[3:4], 5: L[4:5], 6: L[5:6], 7: L[6:7], 8: L[7:8],
          9: [signal_txt(4, 2)], 14: [signal_txt(0, 3)]}
    if "allnow" in OPT:
        for x in L: a(x)
        ex = {2: [signal_txt(8, 1)], 8: [signal_txt(0, 2), signal_txt(1, 3)]}
    gemm_loop(a, "K4", 4, 4, FS, ACC, rdA, rdB, list(range(HA, WS1 + 1)), K4_R, K4_NST, extras=ex, slot0=K4_S0)
    stamp(a, 6)
    a.srd(36, 12, WS_BYTES)
    a.srd(40, 6, MB4)
    a("s_lshl_b32 s21, s2, 14\ns_lshl_b32 s22, s16, 12\ns_add_u32 s21, s21, s22\ns_add_u32 s21, s21, 0x%x" % PX)
    a("v_lshlrev_b32 v8, 4, v1\nv_add_u32 v9, s21, v8")
    a("s_xor_b32 s21, s21, 0x4000\nv_add_u32 v10, s21, v8")
    a("s_lshl_b32 s21, s18, 13\ns_add_u32 s21, s21, %d\ns_lshl_b32 s23, s17, 7\nv_xor_b32 v14, s23, v14\nv_add_u32 v14, s21, v14" % K4_RES)
    a("v_xor_b32 v15, 32, v14\nv_xor_b32 v12, 64, v14\nv_xor_b32 v13, 96, v14")
    for j in range(4):
        for e in range(4):
            z = ACC + 32 + 8 * j + 2 * e
            a("v_cvt_pk_bf16_f32 v%d, v%d, v%d" % (32 + 4 * j + e, z, z + 1))
        for e in range(4): a("v_or_b32 v%d, 1, v%d" % (32 + 4 * j + e, 32 + 4 * j + e))
        a("buffer_store_dwordx4 %s, v9, s[36:39], 0 offen offset:%d sc0 sc1" % (vr(32 + 4 * j, 4), 1024 * j))
    RS = 16
    for i in range(2):
        for s in range(4):
            a("ds_read_b64_tr_b16 %s, v%d offset:%d" % (vr(RS + 8 * i + 2 * s, 2), [14, 15, 12, 13][s], 4096 * i))
    a("v_and_b32 v11, 15, v1\nv_lshlrev_b32 v11, 11, v11\nv_lshlrev_b32 v12, 5, v5\nv_lshrrev_b32 v13, 1, v2\nv_lshlrev_b32 v13, 4, v13\nv_add3_u32 v11, v11, v12, v13")
    a("s_lshl_b32 s21, s14, 18\ns_lshl_b32 s23, s17, 17\ns_add_u32 s21, s21, s23\ns_lshl_b32 s23, s15, 8\ns_add_u32 s21, s21, s23")
    a("s_lshl_b32 s23, s19, 7\ns_add_u32 s21, s21, s23\ns_lshl_b32 s23, s18, 6\ns_add_u32 s21, s21, s23\nv_add_u32 v11, s21, v11")
    a("s_mov_b32 s33, 0xffff0000\ns_mov_b32 s24, 32768\ns_mov_b32 s25, 65536\ns_mov_b32 s26, 98304\ns_mov_b32 s23, 0")
    PO = 48
    a("s_waitcnt vmcnt(0)")
    a("K4_GOT:")
    for j in range(4):
        a("buffer_load_dwordx4 %s, v10, s[36:39], 0 offen offset:%d sc0 sc1" % (vr(PO + 4 * j, 4), 1024 * j))
    a("s_waitcnt vmcnt(0)")
    a("v_and_b32 v64, v%d, v%d" % (PO, PO + 1))
    for k in range(2, 16, 2): a("v_bitop3_b32 v64, v64, v%d, v%d bitop3:0x80" % (PO + k, PO + k + 1))
    a("v_and_b32 v64, 1, v64\nv_cmp_eq_u32 vcc, 0, v64\ns_add_u32 s23, s23, 1\ns_cmp_ge_u32 s23, 0x400000\ns_cbranch_scc1 K4_ALL")
    a("s_cmp_eq_u64 vcc, 0\ns_cbranch_scc0 K4_GOT")
    a("K4_ALL:")
    a("s_waitcnt lgkmcnt(0)")
    T = 112; OUT = 144
    for s in range(4):
        for i in range(2):
            z = ACC + 16 * i + 4 * s; p = PO + 16 * i + 4 * s; t = T + 8 * i; r = RS + 8 * i + 2 * s
            p = PO + 8 * i + 2 * s
            a("v_lshlrev_b32 v%d, 16, v%d\nv_and_b32 v%d, s33, v%d" % (t, p, t + 1, p))
            a("v_lshlrev_b32 v%d, 16, v%d\nv_and_b32 v%d, s33, v%d" % (t + 2, p + 1, t + 3, p + 1))
            for e in range(4): a("v_add_f32 v%d, v%d, v%d" % (z + e, z + e, t + e))
            a("v_cvt_pk_bf16_f32 v%d, v%d, v%d\nv_cvt_pk_bf16_f32 v%d, v%d, v%d" % (z, z, z + 1, z + 2, z + 2, z + 3))
            a("v_and_b32 v%d, s33, v%d\nv_lshlrev_b32 v%d, 16, v%d" % (z + 1, z, z, z))
            a("v_and_b32 v%d, s33, v%d\nv_lshlrev_b32 v%d, 16, v%d" % (z + 3, z + 2, z + 2, z + 2))
            a("v_lshlrev_b32 v%d, 16, v%d\nv_and_b32 v%d, s33, v%d" % (t, r, t + 1, r))
            a("v_lshlrev_b32 v%d, 16, v%d\nv_and_b32 v%d, s33, v%d" % (t + 2, r + 1, t + 3, r + 1))
            for e in range(4): a("v_add_f32 v%d, v%d, v%d" % (z + e, z + e, t + e))
            o = OUT + 4 * s + 2 * i
            a("v_cvt_pk_bf16_f32 v%d, v%d, v%d\nv_cvt_pk_bf16_f32 v%d, v%d, v%d" % (o, z, z + 1, o + 1, z + 2, z + 3))
        o = OUT + 4 * s
        a("s_nop 1")
        a("v_permlane16_swap_b32 v%d, v%d\nv_permlane16_swap_b32 v%d, v%d" % (o, o + 2, o + 1, o + 3))
        a("buffer_store_dwordx4 %s, v11, s[40:43], %s offen%s" % (vr(o, 4), ["0", "s24", "s25", "s26"][s], sflag("k4")))
    if gen.STAMP: a("s_waitcnt vmcnt(0)")
    stamp(a, 7)
    stamp_store(a, 2, 16, 8, 12)
    a("K4_END:\ns_endpgm")

if __name__ == "__main__":
    gen.STAMP = "s_memrealtime" if "--stamp" in sys.argv else ("s_memtime" if "--stampc" in sys.argv else False)
    OPT.update(x[2:] for x in sys.argv[1:] if x.startswith("--"))
    a = Asm()
    gen_k1(a)
    gen_k2(a, prefetch="--nopf" not in sys.argv)
    gen_k3(a)
    hdr = open("sequential_preLN__ssm_conv_h3__dense_activation_silu__prompt.s.ref").read().split("; Override launch")[0]
    txt = a.text(hdr)
    if "noalign" not in OPT:
        import align8
        txt = align8.run(txt, nops="all" if "alignall" in OPT else True)
    sys.stdout.write(txt)
```
